```python
import torch

def _softmax(x, axis=-1):
    return torch.softmax(x, dim=axis)
def _gelu(x):
    return torch.nn.functional.gelu(x, approximate="tanh")
def _silu(x):
    return torch.nn.functional.silu(x)
def _sigmoid(x):
    return torch.sigmoid(x)
def _layernorm(x, axis=-1, eps=1e-5):
    m = x.mean(dim=axis, keepdim=True)
    v = x.var(dim=axis, keepdim=True, unbiased=False)
    return (x - m) / torch.sqrt(v + eps)
def _scatter_add(tgt, idx, src, axis=0):
    return tgt.clone().index_add_(axis, idx, src)
def _segment_sum(src, seg, n):
    out = torch.zeros((n,) + src.shape[1:], dtype=src.dtype)
    return out.index_add_(0, seg, src)
def _pad(x, pw):
    flat = tuple(v for pair in reversed(pw) for v in pair)
    return torch.nn.functional.pad(x, flat)

kernel_name = 'parallel_sum__sliding_block__dense_activation_squared_relu__prompt'

def setup_inputs():

    _w = (lambda a: (lambda t: t.to(torch.bfloat16) if t.is_floating_point() else t)(torch.as_tensor(a)))
    def _A_setup():
        B, S, D = 1, 2048, 448
        return {
            "x": _w((lambda *s: torch.randn(*s, dtype=torch.bfloat16) * 0.05)(B, S, D)),
            "wqkv": _w((lambda *s: torch.randn(*s, dtype=torch.bfloat16) * 0.1)(D, 3 * D)),
            "wo": _w((lambda *s: torch.randn(*s, dtype=torch.bfloat16) * 0.05)(D, D)),
        }
    _A_in = _A_setup()

    def _B_setup():
        B, S, D, F = 1, 2048, 448, 1792
        return {
            "x": _w((lambda *s: torch.randn(*s, dtype=torch.bfloat16) * 0.05)(B, S, D)),
            "w1": _w((lambda *s: torch.randn(*s, dtype=torch.bfloat16) * 0.05)(D, F)),
            "b1": _w((lambda *s: torch.randn(*s, dtype=torch.bfloat16) * 0.4)(F)),
            "w2": _w((lambda *s: torch.randn(*s, dtype=torch.bfloat16) * 0.05)(F, D)),
            "b2": _w((lambda *s: torch.randn(*s, dtype=torch.bfloat16) * 1.6)(D)),
        }
    _B_in = _B_setup()

    return {
        "A_x": _A_in["x"],
        "A_wqkv": _A_in["wqkv"],
        "A_wo": _A_in["wo"],
        "B_x": _B_in["x"],
        "B_w1": _B_in["w1"],
        "B_b1": _B_in["b1"],
        "B_w2": _B_in["w2"],
        "B_b2": _B_in["b2"],
    }

def reference(A_x, A_wqkv, A_wo, B_x, B_w1, B_b1, B_w2, B_b2):
    def _A_ref(x, wqkv, wo):
        B, S, D = x.shape
        H = 16; Dh = D // H; W = 256
        qkv = (lambda x, *d: x.permute(*d))((x @ wqkv).reshape(B, S, 3, H, Dh), 2, 0, 3, 1, 4)
        q, k, v = qkv[0], qkv[1], qkv[2]
        scores = torch.einsum("bhqd,bhkd->bhqk", q, k) * (Dh ** -0.5)
        idx = torch.arange(S)
        mask = (idx[:, None] - idx[None, :] >= 0) & (idx[:, None] - idx[None, :] < W)
        scores = torch.where(mask[None, None], scores, -1e9)
        p = _softmax(scores, axis=-1)
        o = torch.einsum("bhqk,bhkd->bhqd", p, v)
        return (lambda x, *d: x.permute(*d))(o, 0, 2, 1, 3).reshape(B, S, D) @ wo

    def _B_ref(x, w1, b1, w2, b2):
        h = torch.einsum("bsd,df->bsf", x, w1) + b1
        zero = torch.zeros_like(h)
        r = torch.where(h > zero, h, zero)
        h = r * r
        out = torch.einsum("bsf,fd->bsd", h, w2) + b2
        return out

    x = A_x
    xn = _layernorm(x, axis=-1)
    return x + _A_ref(xn, A_wqkv, A_wo) + _B_ref(xn, B_w1, B_b1, B_w2, B_b2)
```

```python
import re

_REG = re.compile(r'^(-|abs\(|\|)?\s*([vsa])(?:(\d+)|\[(\d+):(\d+)\])\)?\|?$')

def split_ops(s):
    out, depth, cur = [], 0, ''
    for ch in s:
        if ch in '[(':
            depth += 1
        elif ch in '])':
            depth -= 1
        if ch == ',' and depth == 0:
            out.append(cur.strip()); cur = ''
        else:
            cur += ch
    if cur.strip():
        out.append(cur.strip())
    return out

def regs_of(tok):
    tok = tok.strip()
    if tok in ('vcc',):
        return {('s', 'vcc')}
    if tok in ('vcc_lo', 'vcc_hi'):
        return {('s', 'vcc')}
    if tok in ('exec', 'exec_lo', 'exec_hi'):
        return {('s', 'exec')}
    if tok == 'm0':
        return {('s', 'm0')}
    m = _REG.match(tok)
    if not m:
        return set()
    k = m.group(2)
    if m.group(3) is not None:
        return {(k, int(m.group(3)))}
    return {(k, n) for n in range(int(m.group(4)), int(m.group(5)) + 1)}

TRANS = ('v_exp_', 'v_log_', 'v_rcp_', 'v_rsq_', 'v_sqrt_', 'v_sin_', 'v_cos_')
NODST_S = ('s_cmp', 's_bitcmp', 's_cbranch', 's_branch', 's_waitcnt', 's_nop', 's_barrier', 's_sleep', 's_setprio', 's_endpgm')

class Ins:
    __slots__ = ('op', 'cls', 'rd', 'wr', 'passes', 'srcc', 'srcab', 'states', 'text', 'wide_store', 'lds_dma', 'sdata')

def v(n, c=1):
    return 'v%d' % n if c == 1 else 'v[%d:%d]' % (n, n + c - 1)
def s(n, c=1):
    return 's%d' % n if c == 1 else 's[%d:%d]' % (n, n + c - 1)

class Asm:
    def __init__(self):
        self.lines = []
        self.hist = []
        self.vm = []
        self.lg = []
        self.maxv = 0
        self.maxs = 0
        self.nlabel = 0
        self.nnop = 0

    def parse(self, text):
        t = text.split(';')[0].strip()
        parts = t.split(None, 1)
        op = parts[0]
        rest = parts[1] if len(parts) > 1 else ''
        ops = split_ops(rest)
        mods = ''
        if ops:
            last = ops[-1].split(None, 1)
            if len(last) > 1:
                ops[-1] = last[0]; mods = last[1]
        I = Ins(); I.op = op; I.text = text; I.states = 1; I.passes = 0
        I.srcc = set(); I.srcab = set(); I.wide_store = False; I.lds_dma = False; I.sdata = set()
        R = [regs_of(o) for o in ops]
        allr = set().union(*R) if R else set()
        rd, wr = set(), set()
        if op.startswith('v_mfma'):
            I.cls = 'mfma'
            I.passes = 8 if '32x32' in op else 4
            wr = R[0]; I.srcab = R[1] | R[2]; I.srcc = R[3]; rd = I.srcab | I.srcc
        elif op.startswith('v_'):
            I.cls = 'valu'
            if op.startswith('v_dot2'):
                I.cls = 'dot'
            elif op.startswith(TRANS):
                I.cls = 'trans'
            elif op.startswith('v_permlane'):
                I.cls = 'perm'
            elif op.startswith(('v_readfirstlane', 'v_readlane')):
                I.cls = 'rdlane'
            wr = set(R[0]) if R else set()
            rd = set().union(*R[1:]) if len(R) > 1 else set()
            if I.cls == 'perm':
                wr = R[0] | R[1]; rd = R[0] | R[1]
            if op.startswith(('v_fmac', 'v_dot2c', 'v_pk_fmac')):
                rd |= R[0]
            if 'dpp' in op or 'row_' in mods or 'quad_perm' in mods:
                I.cls = 'dpp'
            if op.startswith('v_cmpx'):
                wr |= {('s', 'exec')}
            if op == 'v_nop':
                wr = set(); rd = set()
        elif op.startswith(('buffer_', 'global_')):
            I.cls = 'vmem'
            lds = re.search(r'\blds\b', mods) is not None or 'load_lds' in op
            if 'load' in op and not lds:
                wr = R[0]; rd = set().union(*R[1:])
            else:
                rd = allr
                if lds:
                    I.lds_dma = True; rd = rd | {('s', 'm0')}
                if 'store' in op and ('x4' in op or 'x3' in op):
                    I.wide_store = True
                    I.sdata = R[0] if op.startswith('buffer_') else R[1]
                if 'atomic' in op and 'sc0' in mods:
                    wr = R[0]
        elif op.startswith('ds_'):
            I.cls = 'ds'
            if op.startswith(('ds_read', 'ds_bpermute', 'ds_permute', 'ds_swizzle')):
                wr = R[0]; rd = set().union(*R[1:])
            else:
                rd = allr
        elif op.startswith('s_'):
            I.cls = 'salu'
            if op.startswith(('s_load', 's_memtime', 's_memrealtime', 's_buffer_load')):
                I.cls = 'smem'
            if op.startswith(NODST_S):
                rd = allr
            else:
                wr = set(R[0]); rd = set().union(*R[1:]) if len(R) > 1 else set()
                if 'saveexec' in op:
                    wr |= {('s', 'exec')}
                if op.startswith(('s_addk', 's_mulk')):
                    rd |= R[0]
            if op == 's_nop':
                I.states = int(ops[0], 0) + 1
        else:
            raise ValueError('unknown op ' + text)
        I.rd, I.wr = rd, wr
        for k, n in allr:
            if k == 'v': self.maxv = max(self.maxv, n)
            if k == 's' and isinstance(n, int): self.maxs = max(self.maxs, n)
        return I

    @staticmethod
    def need(P, C):
        n = 0
        valuP = P.cls in ('valu', 'trans', 'perm', 'rdlane', 'dpp', 'dot')
        valuC = C.cls in ('valu', 'trans', 'perm', 'rdlane', 'dpp', 'dot')
        pv = {r for r in P.wr if r[0] in 'va'}
        ps = {r for r in P.wr if r[0] == 's'}
        if valuP:
            if pv & C.rd:
                if C.cls == 'mfma': n = max(n, 2)
                if C.cls == 'rdlane': n = max(n, 1)
                if C.cls in ('perm', 'dpp'): n = max(n, 2)
                if P.cls == 'trans' and C.cls != 'trans': n = max(n, 1)
                if P.cls == 'trans' and C.cls == 'trans': n = max(n, 1)
            if P.cls == 'dot' and (pv & (C.rd | C.wr)):
                if not (C.cls == 'dot' and C.op == P.op and (pv & C.wr) and C.op.startswith('v_dot2c')):
                    n = max(n, 3)
            if ps & C.rd:
                if C.cls == 'vmem': n = max(n, 5)
                elif C.cls == 'rdlane': n = max(n, 4)
                elif valuC: n = max(n, 2)
                elif C.cls in ('salu', 'smem'): n = max(n, 2)
            if ('s', 'exec') in ps:
                n = max(n, 5)
        if P.cls == 'mfma':
            p = P.passes
            big = {4: 8, 8: 12}[p]
            if C.cls == 'mfma':
                if P.wr & C.srcab: n = max(n, big)
                if P.wr & C.srcc:
                    if not (P.wr == C.srcc and p == C.passes): n = max(n, p + 2)
                elif P.wr & C.wr:
                    n = max(n, p + 2)
            else:
                if P.wr & (C.rd | C.wr): n = max(n, big)
                if valuC and (P.srcc & C.wr): n = max(n, p - 1)
        if P.cls == 'salu' and ('s', 'm0') in P.wr and C.lds_dma:
            n = max(n, 1)
        if P.wide_store and (P.sdata & C.wr):
            n = max(n, 2)
        return n

    def emit(self, text, tag=None):
        I = self.parse(text)
        dist = 0; pad = 0
        for P in reversed(self.hist):
            need = self.need(P, I)
            if need > dist:
                pad = max(pad, need - dist)
            dist += P.states
            if dist >= 20: break
        if pad:
            self.nnop += pad
            N = self.parse('s_nop %d' % (pad - 1))
            self.hist.append(N); self.lines.append('  s_nop %d' % (pad - 1))
        self.hist.append(I)
        if len(self.hist) > 64: self.hist = self.hist[-40:]
        self.lines.append('  ' + text)
        if I.cls == 'vmem': self.vm.append(tag)
        if I.cls == 'ds': self.lg.append(tag)
        if I.cls == 'smem': self.lg.append('SMEM')
        return I

    __call__ = emit

    def comment(self, t):
        self.lines.append('  ; ' + t)

    def label(self, name):
        self.lines.append(name + ':')

    def newlabel(self, base='L'):
        self.nlabel += 1
        return '%s_%d' % (base, self.nlabel)

    def raw(self, t):
        self.lines.append(t)

    def _cnt(self, lst, tags):
        if not isinstance(tags, (list, tuple, set)): tags = [tags]
        last = -1
        for i, t in enumerate(lst):
            if t in tags: last = i
        return last

    def wait(self, vm=None, lg=None):
        parts = []
        if vm is not None:
            last = len(self.vm) - 1 if vm == 'all' else self._cnt(self.vm, vm)
            if last >= 0:
                n = min(len(self.vm) - 1 - last, 63)
                parts.append('vmcnt(%d)' % n)
                self.vm = self.vm[len(self.vm) - n:] if n else []
        if lg is not None:
            last = len(self.lg) - 1 if lg == 'all' else self._cnt(self.lg, lg)
            if last >= 0:
                n = min(len(self.lg) - 1 - last, 15)
                if 'SMEM' in self.lg: n = 0
                parts.append('lgkmcnt(%d)' % n)
                self.lg = self.lg[len(self.lg) - n:] if n else []
        if parts:
            self.emit('s_waitcnt ' + ' '.join(parts))

    def text(self):
        return '\n'.join(self.lines) + '\n'
```

```python
import sys
sys.path.insert(0, 'gen')
from asmlib import *

NAME = 'parallel_sum__sliding_block__dense_activation_squared_relu__prompt'
QKV_OFF, QKV_BYTES = 0, 128 * 168 * 256
ACT_OFF, ACT_BYTES = 0x600000, 128 * 288 * 256
FLG_OFF, FLG_BYTES = 0x1000000, 8192
UNIT = 16384
MISC = 9 * UNIT

X, WQ, W1, W2, WO, QKV, ACT, OUT, B1, B2, FLG, DBG = 4, 8, 12, 16, 20, 24, 28, 32, 36, 40, 44, 48
sW, sRG, sCH, sI, sJ, sXCD, sIDX = 52, 53, 54, 55, 56, 57, 58
sT0, sT1, sT2, sT3 = 59, 60, 61, 62
sONES = 63
KA = 64
NEG = 0xF149F2CA


def srd(a, base, lo, hi, nbytes, off=0):
    if off:
        a('s_add_u32 s%d, s%d, 0x%x' % (base, lo, off))
        a('s_addc_u32 s%d, s%d, 0' % (base + 1, hi))
    else:
        a('s_mov_b32 s%d, s%d' % (base, lo))
        a('s_mov_b32 s%d, s%d' % (base + 1, hi))
    a('s_mov_b32 s%d, 0x%x' % (base + 2, nbytes))
    a('s_mov_b32 s%d, 0x20000' % (base + 3))


vLANE, vM16, vG = 1, 2, 3


def prologue(a, endlabel):
    a('s_load_dwordx16 s[64:79], s[0:1], 0')
    a('s_load_dwordx4 s[80:83], s[0:1], 64')
    a('s_load_dwordx2 s[84:85], s[0:1], 80')
    a('s_cmp_ge_u32 s2, 256')
    a('s_cbranch_scc1 ' + endlabel)
    a('v_lshrrev_b32 v4, 6, v0')
    a('v_and_b32 v%d, 63, v0' % vLANE)
    a('v_readfirstlane_b32 s%d, v4' % sW)
    a('v_and_b32 v%d, 15, v0' % vM16)
    a('v_bfe_u32 v%d, v0, 4, 2' % vG)
    a('s_and_b32 s%d, s2, 7' % sXCD)
    a('s_lshr_b32 s%d, s2, 3' % sIDX)
    a('s_and_b32 s%d, s%d, 3' % (sRG, sW))
    a('s_lshr_b32 s%d, s%d, 2' % (sCH, sW))
    a('s_mov_b32 s%d, 0x3f803f80' % sONES)
    a.wait(lg='all')
    srd(a, X, 64, 65, 2048 * 896)
    srd(a, WQ, 66, 67, 448 * 2688)
    srd(a, WO, 68, 69, 448 * 896)
    srd(a, W1, 72, 73, 448 * 3584)
    srd(a, B1, 74, 75, 1792 * 2)
    srd(a, W2, 76, 77, 1792 * 896)
    srd(a, B2, 78, 79, 448 * 2)
    srd(a, OUT, 80, 81, 2048 * 896)
    srd(a, DBG, 82, 83, 256)
    srd(a, QKV, 84, 85, QKV_BYTES, QKV_OFF)
    srd(a, ACT, 84, 85, ACT_BYTES, ACT_OFF)
    srd(a, FLG, 84, 85, FLG_BYTES, FLG_OFF)


def xlane_sum(a, r, t, op='v_add_f32'):
    a('v_mov_b32 v%d, v%d' % (t, r))
    a('v_permlane32_swap_b32 v%d, v%d' % (r, t))
    a('%s v%d, v%d, v%d' % (op, r, r, t))
    a('v_mov_b32 v%d, v%d' % (t, r))
    a('v_permlane16_swap_b32 v%d, v%d' % (r, t))
    a('%s v%d, v%d, v%d' % (op, r, r, t))


def round_bf16(a, r):
    a('v_cvt_pk_bf16_f32 v%d, v%d, v%d' % (r, r, r))
    a('v_lshlrev_b32 v%d, 16, v%d' % (r, r))


XF = 128
ACCA, ACCB = 64, 88
WF = 32
def xf(mt, n): return XF + (n * 2 + mt) * 4


def phase_ab(a, st=''):
    vXs0, vXs1, vWqs, vW1s = 4, 5, 6, 7
    vXrd = 8
    vWa = [9, 10, 11]
    vWb = [12, 13, 14, 15]
    vCur = [16, 17, 18, 19]
    vXc = [20, 21]
    vSum = [22, 23]; vSq = [24, 25]
    vCs = 26
    vT0, vT1, vT2, vT3 = 27, 28, 29, 30
    vStQ, vStH = 120, 121
    vCsW, vCsR = 122, 123
    vMean = [124, 125]; vRstd = [126, 127]
    vB1 = 240
    sXbase, sXm0, sWm0 = 64, 65, 66
    sTa = [67, 68, 69]
    sTb = [70, 71, 72, 73]
    sSoff = 74
    sF = 75

    a('s_lshr_b32 s%d, s%d, 1' % (sT0, sXCD))
    a('s_lshl_b32 s%d, s%d, 2' % (sT0, sT0))
    a('s_and_b32 s%d, s%d, 3' % (sT1, sIDX))
    a('s_add_u32 s%d, s%d, s%d' % (sI, sT0, sT1))
    a('s_and_b32 s%d, s%d, 1' % (sT0, sXCD))
    a('s_mul_i32 s%d, s%d, 7' % (sT0, sT0))
    a('s_lshr_b32 s%d, s%d, 2' % (sT1, sIDX))
    a('s_add_u32 s%d, s%d, s%d' % (sJ, sT0, sT1))
    a('v_lshrrev_b32 v%d, 3, v%d' % (vT0, vLANE))
    a('v_lshrrev_b32 v%d, 4, v%d' % (vT1, vLANE))
    a('v_and_b32 v%d, 7, v%d' % (vT2, vLANE))
    a('v_xor_b32 v%d, v%d, v%d' % (vT2, vT2, vT1))
    a('v_mul_u32_u24 v%d, 896, v%d' % (vT0, vT0))
    a('v_lshl_add_u32 v%d, v%d, 4, v%d' % (vXs0, vT2, vT0))
    a('v_xor_b32 v%d, 64, v%d' % (vXs1, vXs0))
    a('v_add_u32 v%d, %d, v%d' % (vXs1, 8 * 896, vXs1))
    a('s_lshl_b32 s%d, s%d, 3' % (sT0, sI))
    a('s_add_u32 s%d, s%d, s%d' % (sT0, sT0, sW))
    a('s_mul_i32 s%d, s%d, %d' % (sXbase, sT0, 16 * 896))
    a('s_lshl_b32 s%d, s%d, 11' % (sXm0, sW))
    a('s_lshl_b32 s%d, s%d, 10' % (sWm0, sW))
    a('s_lshl_b32 s%d, s%d, 1' % (sF, sW))
    a('s_and_b32 s%d, s%d, 4' % (sF, sF))
    a('v_bfe_u32 v%d, v%d, 1, 3' % (vT0, vLANE))
    a('v_xor_b32 v%d, v%d, v%d' % (vT0, vT0, vG))
    a('v_xor_b32 v%d, s%d, v%d' % (vT0, sF, vT0))
    a('v_lshlrev_b32 v%d, 5, v%d' % (vT0, vT0))
    a('v_and_b32 v%d, 1, v%d' % (vT1, vLANE))
    a('v_lshl_add_u32 v%d, v%d, 4, v%d' % (vT0, vT1, vT0))
    a('s_lshl_b32 s%d, s%d, 2' % (sT0, sW))
    a('v_add_u32 v%d, s%d, v%d' % (vT1, sT0, vG))
    a('v_mul_u32_u24 v%d, 2688, v%d' % (vWqs, vT1))
    a('v_mul_u32_u24 v%d, 3584, v%d' % (vW1s, vT1))
    a('s_mul_i32 s%d, s%d, 192' % (sT0, sJ))
    a('s_and_b32 s%d, s%d, 0xffffff80' % (sT0, sT0))
    a('v_add3_u32 v%d, v%d, v%d, s%d' % (vWqs, vWqs, vT0, sT0))
    a('s_lshl_b32 s%d, s%d, 8' % (sT0, sJ))
    a('v_add3_u32 v%d, v%d, v%d, s%d' % (vW1s, vW1s, vT0, sT0))

    def dma_unit(n):
        u = (n % 9) * UNIT
        tag = 'U%d' % n
        if n < 14 and n % 2 == 0:
            d = n // 2
            for jb, vs in ((0, vXs0), (1, vXs1)):
                a('s_add_u32 m0, s%d, %d' % (sXm0, u + jb * 1024 - d * 128))
                a('buffer_load_dwordx4 v%d, s[%d:%d], s%d offen offset:%d lds' % (vs, X, X + 3, sXbase, d * 128), tag)
        else:
            if n < 14: d, vs, srdn, stride = n // 2, vWqs, WQ, 2688
            else: d, vs, srdn, stride = n - 14, vW1s, W1, 3584
            for k2 in range(2):
                a('s_add_u32 m0, s%d, %d' % (sWm0, u + k2 * 8192))
                a('s_mov_b32 s%d, %d' % (sSoff, (64 * d + 32 * k2) * stride))
                a('buffer_load_dwordx4 v%d, s[%d:%d], s%d offen lds' % (vs, srdn, srdn + 3, sSoff), tag)

    for n in range(9): dma_unit(n)

    for s_ in range(3):
        a('s_add_u32 s%d, s%d, %d' % (sTa[s_], sRG, s_))
        a('s_sub_u32 s%d, s%d, 3' % (sT0, sTa[s_]))
        a('s_cmp_ge_u32 s%d, 3' % sTa[s_])
        a('s_cselect_b32 s%d, s%d, s%d' % (sTa[s_], sT0, sTa[s_]))
        a('s_mul_i32 s%d, s%d, 3' % (sT0, sCH))
        a('s_add_u32 s%d, s%d, s%d' % (sTa[s_], sTa[s_], sT0))
    for s_ in range(4):
        a('s_xor_b32 s%d, s%d, %d' % (sTb[s_], sW, s_))
    a('v_lshlrev_b32 v%d, 3, v%d' % (vT0, vG))
    for s_ in range(4):
        a('s_lshl_b32 s%d, s%d, 3' % (sT0, sJ))
        a('s_add_u32 s%d, s%d, s%d' % (sT0, sT0, sTb[s_]))
        a('s_lshl_b32 s%d, s%d, 5' % (sT0, sT0))
        a('buffer_load_dwordx2 v[%d:%d], v%d, s[%d:%d], s%d offen' % (vB1 + 2 * s_, vB1 + 2 * s_ + 1, vT0, B1, B1 + 3, sT0), 'b1')
    a('v_lshrrev_b32 v%d, 1, v%d' % (vT0, vM16))
    a('v_xor_b32 v%d, v%d, v%d' % (vT0, vT0, vG))
    a('v_lshlrev_b32 v%d, 4, v%d' % (vT0, vT0))
    a('v_lshl_add_u32 v%d, v%d, 7, v%d' % (vT0, vM16, vT0))
    a('s_lshl_b32 s%d, s%d, 12' % (sT0, sRG))
    a('v_add_u32 v%d, s%d, v%d' % (vXrd, sT0, vT0))
    a('v_bfe_u32 v%d, v%d, 2, 2' % (vT0, vLANE))
    a('v_lshl_add_u32 v%d, v%d, 3, v%d' % (vT1, vG, vT0))
    a('v_lshlrev_b32 v%d, 8, v%d' % (vT1, vT1))
    a('v_and_b32 v%d, 3, v%d' % (vT2, vLANE))
    a('v_lshl_add_u32 v%d, v%d, 3, v%d' % (vT1, vT2, vT1))
    a('v_and_b32 v%d, 1, v%d' % (vT2, vG))
    a('v_lshl_or_b32 v%d, v%d, 2, v%d' % (vT0, vT2, vT0))
    a('v_lshl_or_b32 v%d, v%d, 5, v%d' % (vT1, vT0, vT1))
    a('s_and_b32 s%d, s%d, 1' % (sT1, sJ))
    a('s_lshl_b32 s%d, s%d, 1' % (sT1, sT1))
    for s_ in range(3):
        a('s_add_u32 s%d, s%d, s%d' % (sT0, sTa[s_], sT1))
        a('s_lshl_b32 s%d, s%d, 5' % (sT0, sT0))
        a('v_xor_b32 v%d, s%d, v%d' % (vWa[s_], sT0, vT1))
    for s_ in range(4):
        a('s_lshl_b32 s%d, s%d, 5' % (sT0, sTb[s_]))
        a('v_xor_b32 v%d, s%d, v%d' % (vWb[s_], sT0, vT1))
    a('v_lshrrev_b32 v%d, 1, v%d' % (vT0, vG))
    a('v_lshlrev_b32 v%d, 8, v%d' % (vT0, vT0))
    a('v_lshl_add_u32 v%d, v%d, 4, v%d' % (vT0, vM16, vT0))
    a('v_mul_u32_u24 v%d, %d, v%d' % (vStQ, 168 * 256, vT2))
    a('v_add_u32 v%d, v%d, v%d' % (vStQ, vStQ, vT0))
    a('v_mul_u32_u24 v%d, %d, v%d' % (vStH, 288 * 256, vT2))
    a('v_add_u32 v%d, v%d, v%d' % (vStH, vStH, vT0))
    a('v_lshlrev_b32 v%d, 2, v%d' % (vCsW, vM16))
    a('v_add_u32 v%d, %d, v%d' % (vCsW, MISC, vCsW))
    a('v_lshlrev_b32 v%d, 4, v%d' % (vCsR, vG))
    a('v_add_u32 v%d, %d, v%d' % (vCsR, MISC, vCsR))
    for r in vSum + vSq + [vCs]:
        a('v_mov_b32 v%d, 0' % r)

    def V(e):
        tags = ['U%d' % (2 * e), 'U%d' % (2 * e + 1)] if e < 7 else ['U%d' % (e + 7)]
        a.wait(vm=tags, lg='all')
        a('s_barrier')
        if e >= 1:
            new = [2 * (e - 1) + 9, 2 * (e - 1) + 10] if e - 1 < 7 else []
            for n in new:
                if n <= 20: dma_unit(n)
        if e < 7:
            ux, uw = (2 * e % 9) * UNIT, ((2 * e + 1) % 9) * UNIT
            a('v_add_u32 v%d, %d, v%d' % (vXc[0], ux, vXrd))
            a('v_xor_b32 v%d, 64, v%d' % (vXc[1], vXc[0]))
            for s_ in range(3): a('v_add_u32 v%d, %d, v%d' % (vCur[s_], uw, vWa[s_]))
        else:
            uw = ((e + 7) % 9) * UNIT
            for s_ in range(4): a('v_add_u32 v%d, %d, v%d' % (vCur[s_], uw, vWb[s_]))

    def R(n):
        tag = 'R%d' % n
        e = n & 1
        ns = 3 if n < 14 else 4
        wf = WF + 16 * (n & 1)
        if n < 14:
            for mt in range(2):
                a('ds_read_b128 %s, v%d offset:%d' % (v(xf(mt, n), 4), vXc[e], mt * 2048), tag)
        for s_ in range(ns):
            for h in range(2):
                a('ds_read_b64_tr_b16 %s, v%d offset:%d' % (v(wf + 4 * s_ + 2 * h, 2), vCur[s_], e * 8192 + h * 1024), tag)

    def M(n):
        a.wait(lg='R%d' % n)
        ns = 3 if n < 14 else 4
        acc = ACCA if n < 14 else ACCB
        k = n % 14
        wf = WF + 16 * (n & 1)
        fill = []
        for r in range(4): fill.append('v_dot2c_f32_bf16 v%d, s%d, v%d' % (vCs, sONES, wf + r))
        if n < 14:
            st_ = []
            for r in range(4):
                for mt in range(2):
                    st_.append('v_dot2c_f32_bf16 v%d, s%d, v%d' % (vSum[mt], sONES, xf(mt, k) + r))
                    st_.append('v_dot2c_f32_bf16 v%d, v%d, v%d' % (vSq[mt], xf(mt, k) + r, xf(mt, k) + r))
            f2 = []
            for r in range(4):
                f2 += st_[4 * r:4 * r + 4] + [fill[r]]
            fill = f2
        nm = ns * 2
        per = (len(fill) + nm - 1) // nm
        idx = 0
        for s_ in range(ns):
            for mt in range(2):
                d = acc + (s_ * 2 + mt) * 4
                c = '0' if k == 0 else v(d, 4)
                a('v_mfma_f32_16x16x32_bf16 %s, %s, %s, %s' % (v(d, 4), v(wf + 4 * s_, 4), v(xf(mt, k), 4), c))
                for f in fill[idx:idx + per]: a(f)
                idx += per

    def colsum_exchange(stile0, slots, vdst):
        xlane_sum(a, vCs, vT0)
        a('s_lshl_b32 s%d, s%d, 6' % (sT0, stile0))
        a('v_add_u32 v%d, s%d, v%d' % (vT1, sT0, vCsW))
        a('ds_write_b32 v%d, v%d' % (vT1, vCs), 'csw')
        a.wait(lg='csw')
        a('s_barrier')
        for s_, sreg in enumerate(slots):
            a('s_lshl_b32 s%d, s%d, 6' % (sT0, sreg))
            a('v_add_u32 v%d, s%d, v%d' % (vT1, sT0, vCsR))
            a('ds_read_b128 %s, v%d' % (v(vdst + 4 * s_, 4), vT1), 'csr')
        a('v_mov_b32 v%d, 0' % vCs)

    def epilogue_a(csreg):
        a.comment('--- epilogue A')
        colsum_exchange(sTa[0], sTa, csreg)
        for mt in range(2):
            xlane_sum(a, vSum[mt], vT0)
            xlane_sum(a, vSq[mt], vT0)
            a('v_mul_f32 v%d, 0x3b124925, v%d' % (vMean[mt], vSum[mt]))
            a('v_mul_f32 v%d, 0x3b124925, v%d' % (vT0, vSq[mt]))
            a('v_fma_f32 v%d, -v%d, v%d, v%d' % (vT0, vMean[mt], vMean[mt], vT0))
            a('v_max_f32 v%d, 0, v%d' % (vT0, vT0))
            round_bf16(a, vT0)
            a('v_add_f32 v%d, 0x3727c5ac, v%d' % (vT0, vT0))
            round_bf16(a, vT0)
            a('v_sqrt_f32 v%d, v%d' % (vT0, vT0))
            round_bf16(a, vT0)
            a('v_rcp_f32 v%d, v%d' % (vRstd[mt], vT0))
            round_bf16(a, vMean[mt])
        a.wait(lg='csr')
        for s_ in range(3):
            for mt in range(2):
                d = ACCA + (s_ * 2 + mt) * 4
                for r in range(4):
                    a('v_fma_f32 v%d, -v%d, v%d, v%d' % (d + r, vMean[mt], csreg + 4 * s_ + r, d + r))
                for r in range(4):
                    a('v_mul_f32 v%d, v%d, v%d' % (d + r, vRstd[mt], d + r))
            d = ACCA + s_ * 8
            a('v_cvt_pk_bf16_f32 v%d, v%d, v%d' % (d, d, d + 1))
            a('v_cvt_pk_bf16_f32 v%d, v%d, v%d' % (d + 1, d + 2, d + 3))
            a('v_cvt_pk_bf16_f32 v%d, v%d, v%d' % (d + 2, d + 4, d + 5))
            a('v_cvt_pk_bf16_f32 v%d, v%d, v%d' % (d + 3, d + 6, d + 7))
            a('s_lshl_b32 s%d, s%d, 2' % (sT0, sI))
            a('s_add_u32 s%d, s%d, s%d' % (sT0, sT0, sRG))
            a('s_mul_i32 s%d, s%d, 168' % (sT0, sT0))
            a('s_mul_i32 s%d, s%d, 6' % (sT1, sJ))
            a('s_add_u32 s%d, s%d, s%d' % (sT0, sT0, sT1))
            a('s_add_u32 s%d, s%d, s%d' % (sT0, sT0, sTa[s_]))
            a('s_lshl_b32 s%d, s%d, 9' % (sT0, sT0))
            a('v_permlane16_swap_b32 v%d, v%d' % (d, d + 2))
            a('v_permlane16_swap_b32 v%d, v%d' % (d + 1, d + 3))
            a('buffer_store_dwordx4 %s, v%d, s[%d:%d], s%d offen%s' % (v(d, 4), vStQ, QKV, QKV + 3, sT0, st), 'stq')

    def epilogue_b(csreg, breg):
        a.comment('--- epilogue B')
        colsum_exchange(sTb[0], sTb, csreg)
        a.wait(vm='b1')
        for s_ in range(4):
            for h in range(2):
                a('v_lshlrev_b32 v%d, 16, v%d' % (breg + 4 * s_ + 2 * h, vB1 + 2 * s_ + h))
                a('v_and_b32 v%d, 0xffff0000, v%d' % (breg + 4 * s_ + 2 * h + 1, vB1 + 2 * s_ + h))
        a.wait(lg='csr')
        for s_ in range(4):
            for mt in range(2):
                d = ACCB + (s_ * 2 + mt) * 4
                for r in range(4):
                    a('v_fma_f32 v%d, -v%d, v%d, v%d' % (d + r, vMean[mt], csreg + 4 * s_ + r, d + r))
                for r in range(4):
                    a('v_fma_f32 v%d, v%d, v%d, v%d' % (d + r, d + r, vRstd[mt], breg + 4 * s_ + r))
                for r in range(4):
                    a('v_max_f32 v%d, 0, v%d' % (d + r, d + r))
                for r in range(4):
                    a('v_mul_f32 v%d, v%d, v%d' % (d + r, d + r, d + r))
            d = ACCB + s_ * 8
            a('v_cvt_pk_bf16_f32 v%d, v%d, v%d' % (d, d, d + 1))
            a('v_cvt_pk_bf16_f32 v%d, v%d, v%d' % (d + 1, d + 2, d + 3))
            a('v_cvt_pk_bf16_f32 v%d, v%d, v%d' % (d + 2, d + 4, d + 5))
            a('v_cvt_pk_bf16_f32 v%d, v%d, v%d' % (d + 3, d + 6, d + 7))
            a('s_lshl_b32 s%d, s%d, 2' % (sT0, sI))
            a('s_add_u32 s%d, s%d, s%d' % (sT0, sT0, sRG))
            a('s_mul_i32 s%d, s%d, 288' % (sT0, sT0))
            a('s_lshl_b32 s%d, s%d, 3' % (sT1, sJ))
            a('s_add_u32 s%d, s%d, s%d' % (sT0, sT0, sT1))
            a('s_add_u32 s%d, s%d, s%d' % (sT0, sT0, sTb[s_]))
            a('s_lshl_b32 s%d, s%d, 9' % (sT0, sT0))
            a('v_permlane16_swap_b32 v%d, v%d' % (d, d + 2))
            a('v_permlane16_swap_b32 v%d, v%d' % (d + 1, d + 3))
            a('buffer_store_dwordx4 %s, v%d, s[%d:%d], s%d offen%s' % (v(d, 4), vStH, ACT, ACT + 3, sT0, st), 'sth')

    V(0); R(0)
    for n in range(28):
        a.comment('kstep %d' % n)
        if n + 1 < 28:
            if (n + 1) % 2 == 0: V((n + 1) // 2)
            R(n + 1)
        M(n)
        if n == 13:
            epilogue_a(ACCB)
    epilogue_b(WF, WF + 16)


def phase_att(a, ld='', st='', kvbase=0):
    sHead, sIA, sC0, sOdd, sTmin = 64, 65, 66, 67, 68
    sC = 69
    vL16, vVs, vKrd, vV0, vV1 = 4, 5, 6, 7, 8
    vT0, vT1, vT2, vT3 = 9, 10, 11, 12
    vMx = 13
    vQ = 16; vC0 = 20; vC16 = 24; vOnes = 28
    KF = 32
    VF = 48
    S = 64
    O0, O1, OS = 132, 136, 140
    a('s_and_b32 s%d, s%d, 1' % (sOdd, sIDX))
    a('s_lshl_b32 s%d, s%d, 1' % (sHead, sXCD))
    a('s_add_u32 s%d, s%d, s%d' % (sHead, sHead, sOdd))
    a('s_lshr_b32 s%d, s%d, 1' % (sIA, sIDX))
    a('s_mul_i32 s%d, s%d, 7' % (sC0, sHead))
    a('s_lshr_b32 s%d, s%d, 1' % (sC0, sC0))
    a('v_lshlrev_b32 v%d, 4, v%d' % (vL16, vLANE))
    a('v_and_b32 v%d, 1, v%d' % (vT0, vG))
    a('v_lshlrev_b32 v%d, 7, v%d' % (vT0, vT0))
    a('v_xor_b32 v%d, v%d, v%d' % (vVs, vL16, vT0))
    a('s_lshl_b32 s%d, s%d, 3' % (sT0, sIA))
    a('s_add_u32 s%d, s%d, s%d' % (sT0, sT0, sW))
    a('s_mul_i32 s%d, s%d, 168' % (sT1, sT0))
    a('s_add_u32 s%d, s%d, s%d' % (sT1, sT1, sC0))
    a('s_lshl_b32 s%d, s%d, 8' % (sT1, sT1))
    a('buffer_load_dwordx4 %s, v%d, s[%d:%d], s%d offen%s' % (v(vQ, 4), vL16, QKV, QKV + 3, sT1, ld), 'q')
    a('s_sub_i32 s%d, 16, s%d' % (sTmin, sT0))
    a('s_mul_i32 s%d, s%d, 3' % (sT2, sW))
    for q in range(3):
        a('s_lshl_b32 s%d, s%d, 3' % (sT0, sIA))
        a('s_add_u32 s%d, s%d, s%d' % (sT0, sT0, sT2))
        a('s_add_i32 s%d, s%d, %d' % (sT0, sT0, q - 16))
        a('s_max_i32 s%d, s%d, 0' % (sT0, sT0))
        a('s_mul_i32 s%d, s%d, 168' % (sT0, sT0))
        a('s_add_u32 s%d, s%d, s%d' % (sT0, sT0, sC0))
        a('s_lshl_b32 s%d, s%d, 8' % (sT0, sT0))
        a('s_lshl_b32 s%d, s%d, 10' % (sT3, sT2))
        a('s_add_u32 m0, s%d, %d' % (sT3, kvbase + 24576 + q * 1024))
        a('s_add_u32 s%d, s%d, %d' % (sT1, sT0, 56 * 256))
        a('buffer_load_dwordx4 v%d, s[%d:%d], s%d offen%s lds' % (vL16, QKV, QKV + 3, sT1, ld), 'kv')
        a('s_add_u32 m0, s%d, %d' % (sT3, kvbase + q * 1024))
        a('s_add_u32 s%d, s%d, %d' % (sT1, sT0, 112 * 256))
        a('buffer_load_dwordx4 v%d, s[%d:%d], s%d offen%s lds' % (vVs, QKV, QKV + 3, sT1, ld), 'kv')
    a('s_lshl_b32 s%d, s%d, 10' % (sT0, sW))
    a('s_add_u32 s%d, s%d, %d' % (sT1, sT0, kvbase + 24576))
    a('v_add_u32 v%d, s%d, v%d' % (vKrd, sT1, vL16))
    a('s_add_u32 s%d, s%d, %d' % (sT1, sT0, kvbase))
    a('v_lshrrev_b32 v%d, 2, v%d' % (vT0, vLANE))
    a('v_and_b32 v%d, 3, v%d' % (vT1, vLANE))
    a('v_add_u32 v%d, s%d, v%d' % (vT1, sOdd, vT1))
    for T, dst in ((0, vV0), (1, vV1)):
        if T: a('v_add_u32 v%d, 4, v%d' % (vT1, vT1))
        a('v_lshrrev_b32 v%d, 1, v%d' % (vT2, vT1))
        a('v_and_b32 v%d, 1, v%d' % (vT3, vT2))
        a('v_lshlrev_b32 v%d, 3, v%d' % (vT3, vT3))
        a('v_xor_b32 v%d, v%d, v%d' % (vT3, vT3, vT0))
        a('v_lshlrev_b32 v%d, 4, v%d' % (vT3, vT3))
        a('v_lshl_add_u32 v%d, v%d, 8, v%d' % (vT3, vT2, vT3))
        a('v_and_b32 v%d, 1, v%d' % (vT2, vT1))
        a('v_lshl_add_u32 v%d, v%d, 3, v%d' % (vT3, vT2, vT3))
        a('v_add_u32 v%d, s%d, v%d' % (dst, sT1, vT3))
    a('v_mov_b32 v%d, 0x%x' % (vT3, NEG))
    a('v_lshlrev_b32 v%d, 2, v%d' % (vT0, vG))
    for r in range(4):
        a('v_add_u32 v%d, %d, v%d' % (vT1, r, vT0))
        a('v_cmp_gt_u32 vcc, v%d, v%d' % (vT1, vM16))
        a('v_cndmask_b32 v%d, v%d, 0, vcc' % (vC0 + r, vT3))
        a('v_cndmask_b32 v%d, 0, v%d, vcc' % (vC16 + r, vT3))
        a('v_mov_b32 v%d, s%d' % (vOnes + r, sONES))
    a('s_sub_u32 s%d, 1, s%d' % (sT0, sOdd))
    a('s_lshl_b32 s%d, s%d, 2' % (sT0, sT0))
    a('s_add_u32 s%d, s%d, 3' % (sT1, sOdd))
    a.wait(vm='q')
    a('v_cmp_eq_u32 vcc, s%d, v%d' % (sT0, vG))
    a('v_cndmask_b32 v%d, v%d, 0, vcc' % (vQ, vQ))
    a('v_cndmask_b32 v%d, v%d, 0, vcc' % (vQ + 1, vQ + 1))
    a('v_cmp_eq_u32 vcc, s%d, v%d' % (sT1, vG))
    a('v_cndmask_b32 v%d, v%d, 0, vcc' % (vQ + 2, vQ + 2))
    a('v_cndmask_b32 v%d, v%d, 0, vcc' % (vQ + 3, vQ + 3))
    a('s_mov_b32 s%d, 0x%08x' % (sC, f32bits(28 ** -0.5 * 1.4426950408889634)))
    a.wait(vm='kv')
    a('s_barrier')
    def rk(t): a('ds_read_b128 %s, v%d offset:%d' % (v(KF + 4 * (t % 4), 4), vKrd, t * 1024), 'K%d' % t)
    for t in range(3): rk(t)
    for t in range(17):
        if t + 3 < 17: rk(t + 3)
        a.wait(lg='K%d' % t)
        c = v(vC0, 4) if t == 0 else (v(vC16, 4) if t == 16 else '0')
        a('v_mfma_f32_16x16x32_bf16 %s, %s, %s, %s' % (v(S + 4 * t, 4), v(KF + 4 * (t % 4), 4), v(vQ, 4), c))
    def rv(u):
        b = VF + 8 * (u & 1)
        for T, ad in ((0, vV0), (1, vV1)):
            for h in range(2 if u < 8 else 1):
                a('ds_read_b64_tr_b16 %s, v%d offset:%d' % (v(b + 4 * T + 2 * h, 2), ad, (2 * u + h) * 1024), 'V%d' % u)
    rv(0); rv(1)
    Ld = a.newlabel('Lfix')
    a('s_nop 7')
    for t in range(16):
        a('s_cmp_le_i32 s%d, %d' % (sTmin, t))
        a('s_cbranch_scc1 ' + Ld)
        for r in range(4): a('v_mov_b32 v%d, 0x%x' % (S + 4 * t + r, NEG))
    a.label(Ld)
    a('v_max3_f32 v%d, v%d, v%d, v%d' % (vMx, S, S + 1, S + 2))
    a('v_max3_f32 v%d, v%d, v%d, v%d' % (vT0, S + 3, S + 4, S + 5))
    k = 6
    tog = 0
    while k + 1 < 68:
        d = vMx if tog == 0 else vT0
        a('v_max3_f32 v%d, v%d, v%d, v%d' % (d, d, S + k, S + k + 1)); k += 2; tog ^= 1
    a('v_max_f32 v%d, v%d, v%d' % (vMx, vMx, vT0))
    xlane_sum(a, vMx, vT0, 'v_max_f32')
    a('v_mul_f32 v%d, s%d, v%d' % (vMx, sC, vMx))
    for u in range(9):
        n = 8 if u < 8 else 4
        b = S + 8 * u
        for r in range(n): a('v_fma_f32 v%d, v%d, s%d, -v%d' % (b + r, b + r, sC, vMx))
        for r in range(n): a('v_exp_f32 v%d, v%d' % (b + r, b + r))
        for r in range(n // 2): a('v_cvt_pk_bf16_f32 v%d, v%d, v%d' % (b + r, b + 2 * r, b + 2 * r + 1))
        a.wait(lg='V%d' % u)
        vb = VF + 8 * (u & 1)
        op = 'v_mfma_f32_16x16x32_bf16' if u < 8 else 'v_mfma_f32_16x16x16_bf16'
        w_ = n // 2
        for o, A in ((O0, vb), (O1, vb + 4), (OS, vOnes)):
            c = '0' if u == 0 else v(o, 4)
            a('%s %s, %s, %s, %s' % (op, v(o, 4), v(A, w_), v(b, w_), c))
        if u + 2 < 9: rv(u + 2)
    a('v_rcp_f32 v%d, v%d' % (vT0, OS))
    a('v_cmp_eq_u32 vcc, 3, v%d' % vG)
    a('v_cndmask_b32 v%d, v%d, 0, vcc' % (vT1, vT0))
    for r in range(4): a('v_mul_f32 v%d, v%d, v%d' % (O0 + r, vT0, O0 + r))
    for r in range(4): a('v_mul_f32 v%d, v%d, v%d' % (O1 + r, vT1, O1 + r))
    for r in range(4): a('v_cvt_pk_bf16_f32 v%d, v%d, v%d' % (O0 + r, O0 + 2 * r, O0 + 2 * r + 1))
    a('s_lshl_b32 s%d, s%d, 3' % (sT0, sIA))
    a('s_add_u32 s%d, s%d, s%d' % (sT0, sT0, sW))
    a('s_mul_i32 s%d, s%d, 72' % (sT0, sT0))
    a('s_add_u32 s%d, s%d, s%d' % (sT0, sT0, sHead))
    a('s_add_u32 s%d, s%d, 56' % (sT0, sT0))
    a('s_lshl_b32 s%d, s%d, 10' % (sT0, sT0))
    a('buffer_store_dwordx4 %s, v%d, s[%d:%d], s%d offen%s' % (v(O0, 4), vL16, ACT, ACT + 3, sT0, st), 'sto')


def f32bits(x):
    import struct
    return struct.unpack('<I', struct.pack('<f', x))[0]


def phase_d(a, ld=''):
    sMT, sNT = 64, 65
    sWs, sOs = 66, 67
    sA = [68, 69, 70]
    sM0 = 71
    sSoff = 72
    vE, vO, vWoE, vWoO, vWo3 = 4, 5, 6, 7, 8
    vRd = [9, 10, 11, 12]
    vAm = [13, 14, 15, 16]
    vT0, vT1, vT2, vT3 = 17, 18, 19, 20
    vL16 = 21
    vXr = 22
    vBr = 26
    vSt = 30
    WFD = 32
    AF = 64
    ACC = 112
    RB = 176
    NSLOT, NA = 5, 3
    a('s_lshl_b32 s%d, s%d, 2' % (sMT, sXCD))
    a('s_and_b32 s%d, s%d, 3' % (sT0, sIDX))
    a('s_add_u32 s%d, s%d, s%d' % (sMT, sMT, sT0))
    a('s_lshr_b32 s%d, s%d, 2' % (sNT, sIDX))
    a('v_bfe_u32 v%d, v%d, 1, 2' % (vT0, vLANE))
    a('v_and_b32 v%d, 1, v%d' % (vT1, vG))
    a('v_xor_b32 v%d, v%d, v%d' % (vT0, vT0, vT1))
    a('v_lshlrev_b32 v%d, 5, v%d' % (vT0, vT0))
    a('v_and_b32 v%d, 1, v%d' % (vT1, vLANE))
    a('v_lshl_add_u32 v%d, v%d, 4, v%d' % (vT0, vT1, vT0))
    a('v_lshrrev_b32 v%d, 3, v%d' % (vT1, vLANE))
    a('v_mul_u32_u24 v%d, 896, v%d' % (vE, vT1))
    a('v_add_u32 v%d, v%d, v%d' % (vE, vE, vT0))
    a('v_xor_b32 v%d, 64, v%d' % (vO, vE))
    a('v_and_b32 v%d, 3, v%d' % (vT1, vT1))
    a('v_mul_u32_u24 v%d, 896, v%d' % (vWo3, vT1))
    a('v_add_u32 v%d, v%d, v%d' % (vWo3, vWo3, vT0))
    a('v_lshrrev_b32 v%d, 5, v%d' % (vT1, vLANE))
    a('v_mul_u32_u24 v%d, %d, v%d' % (vT1, 16 * 896, vT1))
    a('v_add_u32 v%d, v%d, v%d' % (vWoE, vWo3, vT1))
    a('v_xor_b32 v%d, 64, v%d' % (vWoO, vWoE))
    a('v_xor_b32 v%d, 64, v%d' % (vWo3, vWo3))
    a('s_lshl_b32 s%d, s%d, 7' % (sT0, sNT))
    a('s_mul_i32 s%d, s%d, %d' % (sWs, sW, 224 * 896))
    a('s_add_u32 s%d, s%d, s%d' % (sWs, sWs, sT0))
    a('s_mul_i32 s%d, s%d, %d' % (sOs, sW, 56 * 896))
    a('s_add_u32 s%d, s%d, s%d' % (sOs, sOs, sT0))
    a('s_mul_i32 s%d, s%d, %d' % (sM0, sW, NSLOT * 4096))

    def dmaW(s_):
        slot = s_ % NSLOT
        for q in range(4):
            a('s_add_u32 m0, s%d, %d' % (sM0, slot * 4096 + q * 1024))
            if s_ < 7:
                a('s_add_u32 s%d, s%d, %d' % (sSoff, sWs, (32 * s_ + 8 * q) * 896))
                a('buffer_load_dwordx4 v%d, s[%d:%d], s%d offen lds' % (vO if q & 1 else vE, W2, W2 + 3, sSoff), 'W%d' % s_)
            else:
                a('s_add_u32 s%d, s%d, %d' % (sSoff, sOs, (28 * (s_ - 7) + 4 * q) * 896))
                vs = vWo3 if q == 3 else (vWoO if q & 1 else vWoE)
                a('buffer_load_dwordx4 v%d, s[%d:%d], s%d offen lds' % (vs, WO, WO + 3, sSoff), 'W%d' % s_)

    a('v_lshlrev_b32 v%d, 4, v%d' % (vL16, vLANE))
    for ms in range(4):
        a('s_xor_b32 s%d, s%d, %d' % (sT0, sRG, ms))
        a('s_mul_i32 s%d, s%d, %d' % (sT0, sT0, 288 * 256))
        a('v_add_u32 v%d, s%d, v%d' % (vAm[ms], sT0, vL16))
    a('s_mul_i32 s%d, s%d, %d' % (sT0, sMT, 4 * 288 * 256))
    a('s_mul_i32 s%d, s%d, %d' % (sT1, sW, 28 * 256))
    a('s_add_u32 s%d, s%d, s%d' % (sA[0], sT0, sT1))
    a('s_add_u32 s%d, s%d, 4096' % (sA[1], sA[0]))
    a('s_lshl_b32 s%d, s%d, 11' % (sT1, sW))
    a('s_add_u32 s%d, s%d, s%d' % (sA[2], sT0, sT1))
    a('s_add_u32 s%d, s%d, %d' % (sA[2], sA[2], 224 * 256))

    def ldA(s_):
        b = AF + 16 * (s_ % NA)
        so, off = (sA[0], s_ * 1024) if s_ < 4 else ((sA[1], (s_ - 4) * 1024) if s_ < 7 else (sA[2], (s_ - 7) * 1024))
        for ms in range(4):
            a('buffer_load_dwordx4 %s, v%d, s[%d:%d], s%d offen offset:%d%s' % (v(b + 4 * ms, 4), vAm[ms], ACT, ACT + 3, so, off, ld), 'A%d' % s_)

    for s_ in range(NA):
        dmaW(s_); ldA(s_)
    for s_ in range(NA, NSLOT): dmaW(s_)
    a('v_mul_u32_u24 v%d, 896, v%d' % (vT0, vM16))
    a('v_lshl_add_u32 v%d, v%d, 3, v%d' % (vT1, vG, vT0))
    a('v_lshlrev_b32 v%d, 3, v%d' % (vT2, vG))
    a('s_lshl_b32 s%d, s%d, 2' % (sT0, sMT))
    a('s_add_u32 s%d, s%d, s%d' % (sT0, sT0, sRG))
    a('s_mul_i32 s%d, s%d, %d' % (sT0, sT0, 16 * 896))
    a('s_lshl_b32 s%d, s%d, 1' % (sT1, sNT))
    a('s_add_u32 s%d, s%d, s%d' % (sT1, sT1, sCH))
    a('s_lshl_b32 s%d, s%d, 6' % (sT1, sT1))
    a('s_add_u32 s%d, s%d, s%d' % (sT2, sT0, sT1))
    for t in range(2):
        a('buffer_load_dwordx2 %s, v%d, s[%d:%d], s%d offen offset:%d' % (v(vXr + 2 * t, 2), vT1, X, X + 3, sT2, 32 * t), 'res')
        a('buffer_load_dwordx2 %s, v%d, s[%d:%d], s%d offen offset:%d' % (v(vBr + 2 * t, 2), vT2, B2, B2 + 3, sT1, 32 * t), 'res')
    a('v_and_b32 v%d, 1, v%d' % (vT1, vG))
    a('v_lshl_add_u32 v%d, v%d, 5, v%d' % (vSt, vT1, vT0))
    a('v_lshrrev_b32 v%d, 1, v%d' % (vT1, vG))
    a('v_lshl_add_u32 v%d, v%d, 4, v%d' % (vSt, vT1, vSt))
    a('v_bfe_u32 v%d, v%d, 2, 2' % (vT0, vLANE))
    a('v_lshl_add_u32 v%d, v%d, 3, v%d' % (vT1, vG, vT0))
    a('v_lshlrev_b32 v%d, 7, v%d' % (vT1, vT1))
    a('v_and_b32 v%d, 3, v%d' % (vT2, vLANE))
    a('v_lshl_add_u32 v%d, v%d, 3, v%d' % (vT1, vT2, vT1))
    a('v_bfe_u32 v%d, v%d, 3, 2' % (vT0, vLANE))
    a('v_lshl_or_b32 v%d, v%d, 5, v%d' % (vT1, vT0, vT1))
    a('v_add_u32 v%d, s%d, v%d' % (vT1, sM0, vT1))
    a('s_lshl_b32 s%d, s%d, 6' % (sT0, sCH))
    for ts in range(4):
        a('s_xor_b32 s%d, s%d, %d' % (sT1, sT0, ts << 5))
        a('v_xor_b32 v%d, s%d, v%d' % (vRd[ts], sT1, vT1))

    def rdW(s_):
        a.wait(vm='W%d' % s_)
        b = WFD + 16 * (s_ & 1)
        slot = s_ % NSLOT
        for ts in range(4):
            for h in range(2):
                a('ds_read_b64_tr_b16 %s, v%d offset:%d' % (v(b + 4 * ts + 2 * h, 2), vRd[ts], slot * 4096 + h * 512), 'RW%d' % s_)

    rdW(0)
    for s_ in range(9):
        a.comment('D step %d' % s_)
        if s_ + 1 < 9: rdW(s_ + 1)
        a.wait(lg='RW%d' % s_, vm='A%d' % s_)
        if s_ + NSLOT < 9: dmaW(s_ + NSLOT)
        wb = WFD + 16 * (s_ & 1); ab = AF + 16 * (s_ % NA)
        for ms in range(4):
            for ts in range(4):
                d = ACC + (ts * 4 + ms) * 4
                c = '0' if s_ == 0 else v(d, 4)
                a('v_mfma_f32_16x16x32_bf16 %s, %s, %s, %s' % (v(d, 4), v(wb + 4 * ts, 4), v(ab + 4 * ms, 4), c))
        if s_ + NA < 9: ldA(s_ + NA)
    a('s_barrier')
    for dl in range(1, 8):
        ms, th = dl & 3, dl >> 2
        a('s_xor_b32 s%d, s%d, %d' % (sT0, sW, dl))
        a('s_mul_i32 s%d, s%d, 14336' % (sT0, sT0))
        a('v_add_u32 v%d, s%d, v%d' % (vT0 + (dl & 1), sT0, vL16))
        for e in range(2):
            d = ACC + ((2 * th + e) * 4 + ms) * 4
            a('ds_write_b128 v%d, %s offset:%d' % (vT0 + (dl & 1), v(d, 4), ((dl - 1) * 2 + e) * 1024), 'rw')
    a('s_mul_i32 s%d, s%d, 14336' % (sT0, sW))
    a('v_add_u32 v%d, s%d, v%d' % (vT2, sT0, vL16))
    a.wait(lg='rw')
    a('s_barrier')
    for k in range(14):
        a('ds_read_b128 %s, v%d offset:%d' % (v(RB + 4 * k, 4), vT2, k * 1024), 'rr%d' % k)
    a.wait(vm='res')
    own = [ACC, ACC + 16]
    for e in range(2):
        for h in range(2):
            for raw in (vXr, vBr):
                a('v_lshlrev_b32 v%d, 16, v%d' % (vT0, raw + 2 * e + h))
                a('v_and_b32 v%d, 0xffff0000, v%d' % (vT1, raw + 2 * e + h))
                a('v_add_f32 v%d, v%d, v%d' % (own[e] + 2 * h, own[e] + 2 * h, vT0))
                a('v_add_f32 v%d, v%d, v%d' % (own[e] + 2 * h + 1, own[e] + 2 * h + 1, vT1))
    for k in range(14):
        a.wait(lg='rr%d' % k)
        for r in range(4):
            a('v_add_f32 v%d, v%d, v%d' % (own[k & 1] + r, own[k & 1] + r, RB + 4 * k + r))
    o = RB
    a('v_cvt_pk_bf16_f32 v%d, v%d, v%d' % (o, own[0], own[0] + 1))
    a('v_cvt_pk_bf16_f32 v%d, v%d, v%d' % (o + 1, own[0] + 2, own[0] + 3))
    a('v_cvt_pk_bf16_f32 v%d, v%d, v%d' % (o + 2, own[1], own[1] + 1))
    a('v_cvt_pk_bf16_f32 v%d, v%d, v%d' % (o + 3, own[1] + 2, own[1] + 3))
    a('v_permlane16_swap_b32 v%d, v%d' % (o, o + 2))
    a('v_permlane16_swap_b32 v%d, v%d' % (o + 1, o + 3))
    a('buffer_store_dwordx4 %s, v%d, s[%d:%d], s%d offen' % (v(o, 4), vSt, OUT, OUT + 3, sT2), 'out')


HEADER = open('cdna_kernels/%s.s.ref' % NAME).read().split('; Override launch')[0]


def kernel_text(name, body_fn):
    a = Asm()
    end = 'L_end_' + name
    prologue(a, end)
    body_fn(a, end)
    a.label(end)
    a('s_endpgm')
    nv = (a.maxv + 1 + 7) // 8 * 8
    txt = '.globl %s\n.p2align 8\n.type %s,@function\n%s:\n' % (name, name, name) + a.text()
    kd = ('.amdhsa_kernel %s\n  .amdhsa_next_free_vgpr %d\n  .amdhsa_next_free_sgpr 102\n  .amdhsa_accum_offset %d\n'
          '  .amdhsa_group_segment_fixed_size 0\n  .amdhsa_kernarg_size 88\n  .amdhsa_user_sgpr_count 2\n'
          '  .amdhsa_user_sgpr_kernarg_segment_ptr 1\n  .amdhsa_system_sgpr_workgroup_id_x 1\n.end_amdhsa_kernel\n') % (name, nv, nv)
    sys.stderr.write('%s: maxv %d maxs %d nops %d lines %d\n' % (name, a.maxv, a.maxs, a.nnop, len(a.lines)))
    return txt, kd


def skip_spare(a, end):
    a('s_cmp_ge_u32 s%d, 28' % sIDX)
    a('s_cbranch_scc1 ' + end)


def main(out):
    ks = [
        ('ab_kernel', lambda a, e: (skip_spare(a, e), phase_ab(a)), 163840),
        ('att_kernel', lambda a, e: phase_att(a), 51200),
        ('d_kernel', lambda a, e: (skip_spare(a, e), phase_d(a)), 163840),
    ]
    s_ = HEADER
    for n, _, lds in ks:
        s_ += '; @launch kernel=%s grid=(256,1,1) block=(512,1,1) lds=%d\n' % (n, lds)
    s_ += '.amdgcn_target "amdgcn-amd-amdhsa--gfx950"\n.text\n'
    kds = ''
    for n, f, _ in ks:
        t, kd = kernel_text(n, f)
        s_ += t; kds += '.p2align 6\n' + kd
    s_ += '.section .rodata,"a"\n' + kds
    open(out, 'w').write(s_)


if __name__ == '__main__':
    main(sys.argv[1] if len(sys.argv) > 1 else 'cdna_kernels/%s.s' % NAME)
```

```python
import re

_REG = re.compile(r'^(-|abs\(|\|)?\s*([vsa])(?:(\d+)|\[(\d+):(\d+)\])\)?\|?$')

def split_ops(s):
    out, depth, cur = [], 0, ''
    for ch in s:
        if ch in '[(':
            depth += 1
        elif ch in '])':
            depth -= 1
        if ch == ',' and depth == 0:
            out.append(cur.strip()); cur = ''
        else:
            cur += ch
    if cur.strip():
        out.append(cur.strip())
    return out

def regs_of(tok):
    tok = tok.strip()
    if tok in ('vcc',):
        return {('s', 'vcc')}
    if tok in ('vcc_lo', 'vcc_hi'):
        return {('s', 'vcc')}
    if tok in ('exec', 'exec_lo', 'exec_hi'):
        return {('s', 'exec')}
    if tok == 'm0':
        return {('s', 'm0')}
    m = _REG.match(tok)
    if not m:
        return set()
    k = m.group(2)
    if m.group(3) is not None:
        return {(k, int(m.group(3)))}
    return {(k, n) for n in range(int(m.group(4)), int(m.group(5)) + 1)}

TRANS = ('v_exp_', 'v_log_', 'v_rcp_', 'v_rsq_', 'v_sqrt_', 'v_sin_', 'v_cos_')
NODST_S = ('s_cmp', 's_bitcmp', 's_cbranch', 's_branch', 's_waitcnt', 's_nop', 's_barrier', 's_sleep', 's_setprio', 's_endpgm')

class Ins:
    __slots__ = ('op', 'cls', 'rd', 'wr', 'passes', 'srcc', 'srcab', 'states', 'text', 'wide_store', 'lds_dma', 'sdata')

def v(n, c=1):
    return 'v%d' % n if c == 1 else 'v[%d:%d]' % (n, n + c - 1)
def s(n, c=1):
    return 's%d' % n if c == 1 else 's[%d:%d]' % (n, n + c - 1)

class Asm:
    GL = 0
    def __init__(self):
        self.lines = []
        self.hist = []
        self.vm = []
        self.lg = []
        self.maxv = 0
        self.maxs = 0
        self.nlabel = 0
        self.nnop = 0

    def parse(self, text):
        t = text.split(';')[0].strip()
        parts = t.split(None, 1)
        op = parts[0]
        rest = parts[1] if len(parts) > 1 else ''
        ops = split_ops(rest)
        mods = ''
        if ops:
            last = ops[-1].split(None, 1)
            if len(last) > 1:
                ops[-1] = last[0]; mods = last[1]
        I = Ins(); I.op = op; I.text = text; I.states = 1; I.passes = 0
        I.srcc = set(); I.srcab = set(); I.wide_store = False; I.lds_dma = False; I.sdata = set()
        R = [regs_of(o) for o in ops]
        allr = set().union(*R) if R else set()
        rd, wr = set(), set()
        if op.startswith('v_mfma'):
            I.cls = 'mfma'
            I.passes = 8 if '32x32' in op else 4
            wr = R[0]; I.srcab = R[1] | R[2]; I.srcc = R[3]; rd = I.srcab | I.srcc
        elif op.startswith('v_'):
            I.cls = 'valu'
            if op.startswith('v_dot2'):
                I.cls = 'dot'
            elif op.startswith(TRANS):
                I.cls = 'trans'
            elif op.startswith('v_permlane'):
                I.cls = 'perm'
            elif op.startswith(('v_readfirstlane', 'v_readlane')):
                I.cls = 'rdlane'
            wr = set(R[0]) if R else set()
            rd = set().union(*R[1:]) if len(R) > 1 else set()
            if I.cls == 'perm':
                wr = R[0] | R[1]; rd = R[0] | R[1]
            if op.startswith(('v_fmac', 'v_dot2c', 'v_pk_fmac')):
                rd |= R[0]
            if 'dpp' in op or 'row_' in mods or 'quad_perm' in mods:
                I.cls = 'dpp'
            if op.startswith('v_cmpx'):
                wr |= {('s', 'exec')}
            if op == 'v_nop':
                wr = set(); rd = set()
        elif op.startswith(('buffer_', 'global_')):
            I.cls = 'vmem'
            lds = re.search(r'\blds\b', mods) is not None or 'load_lds' in op
            if 'load' in op and not lds:
                wr = R[0]; rd = set().union(*R[1:])
            else:
                rd = allr
                if lds:
                    I.lds_dma = True; rd = rd | {('s', 'm0')}
                if 'store' in op and ('x4' in op or 'x3' in op):
                    I.wide_store = True
                    I.sdata = R[0] if op.startswith('buffer_') else R[1]
                if 'atomic' in op and 'sc0' in mods:
                    wr = R[0]
        elif op.startswith('ds_'):
            I.cls = 'ds'
            if op.startswith(('ds_read', 'ds_bpermute', 'ds_permute', 'ds_swizzle')):
                wr = R[0]; rd = set().union(*R[1:])
            else:
                rd = allr
        elif op.startswith('s_'):
            I.cls = 'salu'
            if op.startswith(('s_load', 's_memtime', 's_memrealtime', 's_buffer_load')):
                I.cls = 'smem'
            if op.startswith(NODST_S):
                rd = allr
            else:
                wr = set(R[0]); rd = set().union(*R[1:]) if len(R) > 1 else set()
                if 'saveexec' in op:
                    wr |= {('s', 'exec')}
                if op.startswith(('s_addk', 's_mulk')):
                    rd |= R[0]
            if op == 's_nop':
                I.states = int(ops[0], 0) + 1
        else:
            raise ValueError('unknown op ' + text)
        I.rd, I.wr = rd, wr
        for k, n in allr:
            if k == 'v': self.maxv = max(self.maxv, n)
            if k == 's' and isinstance(n, int): self.maxs = max(self.maxs, n)
        return I

    @staticmethod
    def need(P, C):
        n = 0
        valuP = P.cls in ('valu', 'trans', 'perm', 'rdlane', 'dpp', 'dot')
        valuC = C.cls in ('valu', 'trans', 'perm', 'rdlane', 'dpp', 'dot')
        pv = {r for r in P.wr if r[0] in 'va'}
        ps = {r for r in P.wr if r[0] == 's'}
        if valuP:
            if pv & C.rd:
                if C.cls == 'mfma': n = max(n, 2)
                if C.cls == 'rdlane': n = max(n, 1)
                if C.cls in ('perm', 'dpp'): n = max(n, 2)
                if P.cls == 'trans' and C.cls != 'trans': n = max(n, 1)
                if P.cls == 'trans' and C.cls == 'trans': n = max(n, 1)
            if P.cls == 'dot' and (pv & (C.rd | C.wr)):
                if not (C.cls == 'dot' and C.op == P.op and (pv & C.wr) and C.op.startswith('v_dot2c')):
                    n = max(n, 3)
            if ps & C.rd:
                if C.cls == 'vmem': n = max(n, 5)
                elif C.cls == 'rdlane': n = max(n, 4)
                elif valuC: n = max(n, 2)
                elif C.cls in ('salu', 'smem'): n = max(n, 2)
            if ('s', 'exec') in ps:
                n = max(n, 5)
        if P.cls == 'mfma':
            p = P.passes
            big = {4: 8, 8: 12}[p]
            if C.cls == 'mfma':
                if P.wr & C.srcab: n = max(n, big)
                if P.wr & C.srcc:
                    if not (P.wr == C.srcc and p == C.passes): n = max(n, p + 2)
                elif P.wr & C.wr:
                    n = max(n, p + 2)
            else:
                if P.wr & (C.rd | C.wr): n = max(n, big)
                if valuC and (P.srcc & C.wr): n = max(n, p - 1)
        if P.cls == 'salu' and ('s', 'm0') in P.wr and C.lds_dma:
            n = max(n, 1)
        if P.wide_store and (P.sdata & C.wr):
            n = max(n, 2)
        return n

    def emit(self, text, tag=None):
        I = self.parse(text)
        dist = 0; pad = 0
        for P in reversed(self.hist):
            need = self.need(P, I)
            if need > dist:
                pad = max(pad, need - dist)
            dist += P.states
            if dist >= 20: break
        if pad:
            self.nnop += pad
            N = self.parse('s_nop %d' % (pad - 1))
            self.hist.append(N); self.lines.append('  s_nop %d' % (pad - 1))
        self.hist.append(I)
        if len(self.hist) > 64: self.hist = self.hist[-40:]
        self.lines.append('  ' + text)
        if I.cls == 'vmem': self.vm.append(tag)
        if I.cls == 'ds': self.lg.append(tag)
        if I.cls == 'smem': self.lg.append('SMEM')
        return I

    __call__ = emit

    def comment(self, t):
        self.lines.append('  ; ' + t)

    def label(self, name):
        self.lines.append(name + ':')

    def newlabel(self, base='L'):
        Asm.GL += 1
        return '%s_%d' % (base, Asm.GL)

    def raw(self, t):
        self.lines.append(t)

    def _cnt(self, lst, tags):
        if not isinstance(tags, (list, tuple, set)): tags = [tags]
        last = -1
        for i, t in enumerate(lst):
            if t in tags: last = i
        return last

    def wait(self, vm=None, lg=None):
        parts = []
        if vm is not None:
            last = len(self.vm) - 1 if vm == 'all' else self._cnt(self.vm, vm)
            if last >= 0:
                n = min(len(self.vm) - 1 - last, 63)
                parts.append('vmcnt(%d)' % n)
                self.vm = self.vm[len(self.vm) - n:] if n else []
        if lg is not None:
            last = len(self.lg) - 1 if lg == 'all' else self._cnt(self.lg, lg)
            if last >= 0:
                n = min(len(self.lg) - 1 - last, 15)
                if 'SMEM' in self.lg: n = 0
                parts.append('lgkmcnt(%d)' % n)
                self.lg = self.lg[len(self.lg) - n:] if n else []
        if parts:
            self.emit('s_waitcnt ' + ' '.join(parts))

    diag = False
    def stamp(self, name):
        if not self.diag: return
        if not hasattr(self, 'st_names'): self.st_names = []; self.st_pend = []
        if len(self.st_pend) >= 5: self.stamp_flush()
        k = len(self.st_names); self.st_names.append(name)
        r = 86 + 2 * len(self.st_pend)
        I = self.parse('s_memtime s[%d:%d]' % (r, r + 1)); self.hist.append(I)
        self.lines.append('  s_memtime s[%d:%d]' % (r, r + 1))
        self.st_pend.append((k, r))
    def stamp_flush(self):
        if not self.diag or not getattr(self, 'st_pend', None): return
        self.emit('s_waitcnt lgkmcnt(0)'); self.lg = []
        for k, r in self.st_pend:
            self.emit('v_writelane_b32 v255, s%d, %d' % (r, k))
        self.st_pend = []

    def text(self):
        return '\n'.join(self.lines) + '\n'
```

```python
import sys
sys.path.insert(0, 'gen')
from asmlib import *

NAME = 'parallel_sum__sliding_block__dense_activation_squared_relu__prompt'
QKV_OFF, QKV_BYTES = 0, 128 * 168 * 256
ACT_OFF, ACT_BYTES = 0x600000, 128 * 288 * 256
FLG_OFF, FLG_BYTES = 0x1000000, 8192
UNIT = 16384
MISC = 9 * UNIT

X, WQ, W1, W2, WO, QKV, ACT, OUT, B1, B2, FLG, DBG = 4, 8, 12, 16, 20, 24, 28, 32, 36, 40, 44, 48
sW, sRG, sCH, sI, sJ, sXCD, sIDX = 52, 53, 54, 55, 56, 57, 58
sT0, sT1, sT2, sT3 = 59, 60, 61, 62
sONES = 63
KA = 64
NEG = 0xF149F2CA


def srd(a, base, lo, hi, nbytes, off=0):
    if off:
        a('s_add_u32 s%d, s%d, 0x%x' % (base, lo, off))
        a('s_addc_u32 s%d, s%d, 0' % (base + 1, hi))
    else:
        a('s_mov_b32 s%d, s%d' % (base, lo))
        a('s_mov_b32 s%d, s%d' % (base + 1, hi))
    a('s_mov_b32 s%d, 0x%x' % (base + 2, nbytes))
    a('s_mov_b32 s%d, 0x20000' % (base + 3))


vLANE, vM16, vG = 1, 2, 3


def prologue(a, endlabel):
    a.stamp('start')
    a('s_load_dwordx16 s[64:79], s[0:1], 0')
    a('s_load_dwordx4 s[80:83], s[0:1], 64')
    a('s_load_dwordx2 s[84:85], s[0:1], 80')
    a('s_cmp_ge_u32 s2, 256')
    a('s_cbranch_scc1 ' + endlabel)
    a('v_lshrrev_b32 v4, 6, v0')
    a('v_and_b32 v%d, 63, v0' % vLANE)
    a('v_readfirstlane_b32 s%d, v4' % sW)
    a('v_and_b32 v%d, 15, v0' % vM16)
    a('v_bfe_u32 v%d, v0, 4, 2' % vG)
    a('s_and_b32 s%d, s2, 7' % sXCD)
    a('s_lshr_b32 s%d, s2, 3' % sIDX)
    a('s_and_b32 s%d, s%d, 3' % (sRG, sW))
    a('s_lshr_b32 s%d, s%d, 2' % (sCH, sW))
    a('s_mov_b32 s%d, 0x3f803f80' % sONES)
    a.wait(lg='all')
    srd(a, X, 64, 65, 2048 * 896)
    srd(a, WQ, 66, 67, 448 * 2688)
    srd(a, WO, 68, 69, 448 * 896)
    srd(a, W1, 72, 73, 448 * 3584)
    srd(a, B1, 74, 75, 1792 * 2)
    srd(a, W2, 76, 77, 1792 * 896)
    srd(a, B2, 78, 79, 448 * 2)
    srd(a, OUT, 80, 81, 2048 * 896)
    srd(a, DBG, 82, 83, 256)
    srd(a, QKV, 84, 85, QKV_BYTES, QKV_OFF)
    srd(a, ACT, 84, 85, ACT_BYTES, ACT_OFF)
    srd(a, FLG, 84, 85, FLG_BYTES, FLG_OFF)
    if a.diag:
        srd(a, 96, 84, 85, 3 * 2048 * 256, 0x2000000)
        a('v_mov_b32 v255, 0')


def xlane_sum(a, r, t, op='v_add_f32'):
    a('v_mov_b32 v%d, v%d' % (t, r))
    a('v_permlane32_swap_b32 v%d, v%d' % (r, t))
    a('%s v%d, v%d, v%d' % (op, r, r, t))
    a('v_mov_b32 v%d, v%d' % (t, r))
    a('v_permlane16_swap_b32 v%d, v%d' % (r, t))
    a('%s v%d, v%d, v%d' % (op, r, r, t))


def round_bf16(a, r):
    a('v_cvt_pk_bf16_f32 v%d, v%d, v%d' % (r, r, r))
    a('v_lshlrev_b32 v%d, 16, v%d' % (r, r))


XF = 128
ACCA, ACCB = 64, 88
WF = 32
def xf(mt, n): return XF + (n * 2 + mt) * 4


def phase_ab(a, st=''):
    vXs0, vXs1, vWqs, vW1s = 4, 5, 6, 7
    vXrd = 8
    vWa = [9, 10, 11]
    vWb = [12, 13, 14, 15]
    vCur = [16, 17, 18, 19]
    vXc = [20, 21]
    vSum = [22, 23]; vSq = [24, 25]
    vCs = 26
    vT0, vT1, vT2, vT3 = 27, 28, 29, 30
    vStQ, vStH = 120, 121
    vCsW, vCsR = 122, 123
    vMean = [124, 125]; vRstd = [126, 127]
    vB1 = 240
    sXbase, sXm0, sWm0 = 64, 65, 66
    sTa = [67, 68, 69]
    sTb = [70, 71, 72, 73]
    sSoff = 74
    sF = 75

    a('s_lshr_b32 s%d, s%d, 1' % (sT0, sXCD))
    a('s_lshl_b32 s%d, s%d, 2' % (sT0, sT0))
    a('s_and_b32 s%d, s%d, 3' % (sT1, sIDX))
    a('s_add_u32 s%d, s%d, s%d' % (sI, sT0, sT1))
    a('s_and_b32 s%d, s%d, 1' % (sT0, sXCD))
    a('s_mul_i32 s%d, s%d, 7' % (sT0, sT0))
    a('s_lshr_b32 s%d, s%d, 2' % (sT1, sIDX))
    a('s_add_u32 s%d, s%d, s%d' % (sJ, sT0, sT1))
    a('v_lshrrev_b32 v%d, 3, v%d' % (vT0, vLANE))
    a('v_lshrrev_b32 v%d, 4, v%d' % (vT1, vLANE))
    a('v_and_b32 v%d, 7, v%d' % (vT2, vLANE))
    a('v_xor_b32 v%d, v%d, v%d' % (vT2, vT2, vT1))
    a('v_mul_u32_u24 v%d, 896, v%d' % (vT0, vT0))
    a('v_lshl_add_u32 v%d, v%d, 4, v%d' % (vXs0, vT2, vT0))
    a('v_xor_b32 v%d, 64, v%d' % (vXs1, vXs0))
    a('v_add_u32 v%d, %d, v%d' % (vXs1, 8 * 896, vXs1))
    a('s_lshl_b32 s%d, s%d, 3' % (sT0, sI))
    a('s_add_u32 s%d, s%d, s%d' % (sT0, sT0, sW))
    a('s_mul_i32 s%d, s%d, %d' % (sXbase, sT0, 16 * 896))
    a('s_lshl_b32 s%d, s%d, 11' % (sXm0, sW))
    a('s_lshl_b32 s%d, s%d, 10' % (sWm0, sW))
    a('s_lshl_b32 s%d, s%d, 1' % (sF, sW))
    a('s_and_b32 s%d, s%d, 4' % (sF, sF))
    a('v_bfe_u32 v%d, v%d, 1, 3' % (vT0, vLANE))
    a('v_xor_b32 v%d, v%d, v%d' % (vT0, vT0, vG))
    a('v_xor_b32 v%d, s%d, v%d' % (vT0, sF, vT0))
    a('v_lshlrev_b32 v%d, 5, v%d' % (vT0, vT0))
    a('v_and_b32 v%d, 1, v%d' % (vT1, vLANE))
    a('v_lshl_add_u32 v%d, v%d, 4, v%d' % (vT0, vT1, vT0))
    a('s_lshl_b32 s%d, s%d, 2' % (sT0, sW))
    a('v_add_u32 v%d, s%d, v%d' % (vT1, sT0, vG))
    a('v_mul_u32_u24 v%d, 2688, v%d' % (vWqs, vT1))
    a('v_mul_u32_u24 v%d, 3584, v%d' % (vW1s, vT1))
    a('s_mul_i32 s%d, s%d, 192' % (sT0, sJ))
    a('s_and_b32 s%d, s%d, 0xffffff80' % (sT0, sT0))
    a('v_add3_u32 v%d, v%d, v%d, s%d' % (vWqs, vWqs, vT0, sT0))
    a('s_lshl_b32 s%d, s%d, 8' % (sT0, sJ))
    a('v_add3_u32 v%d, v%d, v%d, s%d' % (vW1s, vW1s, vT0, sT0))

    def dma_unit(n):
        u = (n % 9) * UNIT
        tag = 'U%d' % n
        if n < 14 and n % 2 == 0:
            d = n // 2
            for jb, vs in ((0, vXs0), (1, vXs1)):
                a('s_add_u32 m0, s%d, %d' % (sXm0, u + jb * 1024 - d * 128))
                a('buffer_load_dwordx4 v%d, s[%d:%d], s%d offen offset:%d lds' % (vs, X, X + 3, sXbase, d * 128), tag)
        else:
            if n < 14: d, vs, srdn, stride = n // 2, vWqs, WQ, 2688
            else: d, vs, srdn, stride = n - 14, vW1s, W1, 3584
            for k2 in range(2):
                a('s_add_u32 m0, s%d, %d' % (sWm0, u + k2 * 8192))
                a('s_mov_b32 s%d, %d' % (sSoff, (64 * d + 32 * k2) * stride))
                a('buffer_load_dwordx4 v%d, s[%d:%d], s%d offen lds' % (vs, srdn, srdn + 3, sSoff), tag)

    for n in range(9): dma_unit(n)

    for s_ in range(3):
        a('s_add_u32 s%d, s%d, %d' % (sTa[s_], sRG, s_))
        a('s_sub_u32 s%d, s%d, 3' % (sT0, sTa[s_]))
        a('s_cmp_ge_u32 s%d, 3' % sTa[s_])
        a('s_cselect_b32 s%d, s%d, s%d' % (sTa[s_], sT0, sTa[s_]))
        a('s_mul_i32 s%d, s%d, 3' % (sT0, sCH))
        a('s_add_u32 s%d, s%d, s%d' % (sTa[s_], sTa[s_], sT0))
    for s_ in range(4):
        a('s_xor_b32 s%d, s%d, %d' % (sTb[s_], sW, s_))
    a('v_lshlrev_b32 v%d, 3, v%d' % (vT0, vG))
    for s_ in range(4):
        a('s_lshl_b32 s%d, s%d, 3' % (sT0, sJ))
        a('s_add_u32 s%d, s%d, s%d' % (sT0, sT0, sTb[s_]))
        a('s_lshl_b32 s%d, s%d, 5' % (sT0, sT0))
        a('buffer_load_dwordx2 v[%d:%d], v%d, s[%d:%d], s%d offen' % (vB1 + 2 * s_, vB1 + 2 * s_ + 1, vT0, B1, B1 + 3, sT0), 'b1')
    a('v_lshrrev_b32 v%d, 1, v%d' % (vT0, vM16))
    a('v_xor_b32 v%d, v%d, v%d' % (vT0, vT0, vG))
    a('v_lshlrev_b32 v%d, 4, v%d' % (vT0, vT0))
    a('v_lshl_add_u32 v%d, v%d, 7, v%d' % (vT0, vM16, vT0))
    a('s_lshl_b32 s%d, s%d, 12' % (sT0, sRG))
    a('v_add_u32 v%d, s%d, v%d' % (vXrd, sT0, vT0))
    a('v_bfe_u32 v%d, v%d, 2, 2' % (vT0, vLANE))
    a('v_lshl_add_u32 v%d, v%d, 3, v%d' % (vT1, vG, vT0))
    a('v_lshlrev_b32 v%d, 8, v%d' % (vT1, vT1))
    a('v_and_b32 v%d, 3, v%d' % (vT2, vLANE))
    a('v_lshl_add_u32 v%d, v%d, 3, v%d' % (vT1, vT2, vT1))
    a('v_and_b32 v%d, 1, v%d' % (vT2, vG))
    a('v_lshl_or_b32 v%d, v%d, 2, v%d' % (vT0, vT2, vT0))
    a('v_lshl_or_b32 v%d, v%d, 5, v%d' % (vT1, vT0, vT1))
    a('s_and_b32 s%d, s%d, 1' % (sT1, sJ))
    a('s_lshl_b32 s%d, s%d, 1' % (sT1, sT1))
    for s_ in range(3):
        a('s_add_u32 s%d, s%d, s%d' % (sT0, sTa[s_], sT1))
        a('s_lshl_b32 s%d, s%d, 5' % (sT0, sT0))
        a('v_xor_b32 v%d, s%d, v%d' % (vWa[s_], sT0, vT1))
    for s_ in range(4):
        a('s_lshl_b32 s%d, s%d, 5' % (sT0, sTb[s_]))
        a('v_xor_b32 v%d, s%d, v%d' % (vWb[s_], sT0, vT1))
    a('v_lshrrev_b32 v%d, 1, v%d' % (vT0, vG))
    a('v_lshlrev_b32 v%d, 8, v%d' % (vT0, vT0))
    a('v_lshl_add_u32 v%d, v%d, 4, v%d' % (vT0, vM16, vT0))
    a('v_mul_u32_u24 v%d, %d, v%d' % (vStQ, 168 * 256, vT2))
    a('v_add_u32 v%d, v%d, v%d' % (vStQ, vStQ, vT0))
    a('v_mul_u32_u24 v%d, %d, v%d' % (vStH, 288 * 256, vT2))
    a('v_add_u32 v%d, v%d, v%d' % (vStH, vStH, vT0))
    a('v_lshlrev_b32 v%d, 2, v%d' % (vCsW, vM16))
    a('v_add_u32 v%d, %d, v%d' % (vCsW, MISC, vCsW))
    a('v_lshlrev_b32 v%d, 4, v%d' % (vCsR, vG))
    a('v_add_u32 v%d, %d, v%d' % (vCsR, MISC, vCsR))
    for r in vSum + vSq + [vCs]:
        a('v_mov_b32 v%d, 0' % r)

    def V(e):
        tags = ['U%d' % (2 * e), 'U%d' % (2 * e + 1)] if e < 7 else ['U%d' % (e + 7)]
        a.stamp('V%d arr' % e); a.stamp_flush()
        a.wait(vm=tags, lg='all')
        a.stamp('V%d vm' % e)
        a('s_barrier')
        a.stamp('V%d rel' % e)
        if e >= 1:
            new = [2 * (e - 1) + 9, 2 * (e - 1) + 10] if e - 1 < 7 else []
            for n in new:
                if n <= 20: dma_unit(n)
        if e < 7:
            ux, uw = (2 * e % 9) * UNIT, ((2 * e + 1) % 9) * UNIT
            a('v_add_u32 v%d, %d, v%d' % (vXc[0], ux, vXrd))
            a('v_xor_b32 v%d, 64, v%d' % (vXc[1], vXc[0]))
            for s_ in range(3): a('v_add_u32 v%d, %d, v%d' % (vCur[s_], uw, vWa[s_]))
        else:
            uw = ((e + 7) % 9) * UNIT
            for s_ in range(4): a('v_add_u32 v%d, %d, v%d' % (vCur[s_], uw, vWb[s_]))

    def R(n):
        tag = 'R%d' % n
        e = n & 1
        ns = 3 if n < 14 else 4
        wf = WF + 16 * (n & 1)
        if n < 14:
            for mt in range(2):
                a('ds_read_b128 %s, v%d offset:%d' % (v(xf(mt, n), 4), vXc[e], mt * 2048), tag)
        for s_ in range(ns):
            for h in range(2):
                a('ds_read_b64_tr_b16 %s, v%d offset:%d' % (v(wf + 4 * s_ + 2 * h, 2), vCur[s_], e * 8192 + h * 1024), tag)

    def M(n):
        a.wait(lg='R%d' % n)
        ns = 3 if n < 14 else 4
        acc = ACCA if n < 14 else ACCB
        k = n % 14
        wf = WF + 16 * (n & 1)
        fill = []
        for r in range(4): fill.append('v_dot2c_f32_bf16 v%d, s%d, v%d' % (vCs, sONES, wf + r))
        if n < 14:
            st_ = []
            for r in range(4):
                for mt in range(2):
                    st_.append('v_dot2c_f32_bf16 v%d, s%d, v%d' % (vSum[mt], sONES, xf(mt, k) + r))
                    st_.append('v_dot2c_f32_bf16 v%d, v%d, v%d' % (vSq[mt], xf(mt, k) + r, xf(mt, k) + r))
            f2 = []
            for r in range(4):
                f2 += st_[4 * r:4 * r + 4] + [fill[r]]
            fill = f2
        nm = ns * 2
        per = (len(fill) + nm - 1) // nm
        idx = 0
        for s_ in range(ns):
            for mt in range(2):
                d = acc + (s_ * 2 + mt) * 4
                c = '0' if k == 0 else v(d, 4)
                a('v_mfma_f32_16x16x32_bf16 %s, %s, %s, %s' % (v(d, 4), v(wf + 4 * s_, 4), v(xf(mt, k), 4), c))
                for f in fill[idx:idx + per]: a(f)
                idx += per

    def colsum_exchange(stile0, slots, vdst):
        xlane_sum(a, vCs, vT0)
        a('s_lshl_b32 s%d, s%d, 6' % (sT0, stile0))
        a('v_add_u32 v%d, s%d, v%d' % (vT1, sT0, vCsW))
        a('ds_write_b32 v%d, v%d' % (vT1, vCs), 'csw')
        a.wait(lg='csw')
        a('s_barrier')
        for s_, sreg in enumerate(slots):
            a('s_lshl_b32 s%d, s%d, 6' % (sT0, sreg))
            a('v_add_u32 v%d, s%d, v%d' % (vT1, sT0, vCsR))
            a('ds_read_b128 %s, v%d' % (v(vdst + 4 * s_, 4), vT1), 'csr')
        a('v_mov_b32 v%d, 0' % vCs)

    def epilogue_a(csreg):
        a.comment('--- epilogue A')
        a.stamp('epiA')
        colsum_exchange(sTa[0], sTa, csreg)
        for mt in range(2):
            xlane_sum(a, vSum[mt], vT0)
            xlane_sum(a, vSq[mt], vT0)
            a('v_mul_f32 v%d, 0x3b124925, v%d' % (vMean[mt], vSum[mt]))
            a('v_mul_f32 v%d, 0x3b124925, v%d' % (vT0, vSq[mt]))
            a('v_fma_f32 v%d, -v%d, v%d, v%d' % (vT0, vMean[mt], vMean[mt], vT0))
            a('v_max_f32 v%d, 0, v%d' % (vT0, vT0))
            round_bf16(a, vT0)
            a('v_add_f32 v%d, 0x3727c5ac, v%d' % (vT0, vT0))
            round_bf16(a, vT0)
            a('v_sqrt_f32 v%d, v%d' % (vT0, vT0))
            round_bf16(a, vT0)
            a('v_rcp_f32 v%d, v%d' % (vRstd[mt], vT0))
            round_bf16(a, vMean[mt])
        a.wait(lg='csr')
        for s_ in range(3):
            for mt in range(2):
                d = ACCA + (s_ * 2 + mt) * 4
                for r in range(4):
                    a('v_fma_f32 v%d, -v%d, v%d, v%d' % (d + r, vMean[mt], csreg + 4 * s_ + r, d + r))
                for r in range(4):
                    a('v_mul_f32 v%d, v%d, v%d' % (d + r, vRstd[mt], d + r))
            d = ACCA + s_ * 8
            a('v_cvt_pk_bf16_f32 v%d, v%d, v%d' % (d, d, d + 1))
            a('v_cvt_pk_bf16_f32 v%d, v%d, v%d' % (d + 1, d + 2, d + 3))
            a('v_cvt_pk_bf16_f32 v%d, v%d, v%d' % (d + 2, d + 4, d + 5))
            a('v_cvt_pk_bf16_f32 v%d, v%d, v%d' % (d + 3, d + 6, d + 7))
            a('s_lshl_b32 s%d, s%d, 2' % (sT0, sI))
            a('s_add_u32 s%d, s%d, s%d' % (sT0, sT0, sRG))
            a('s_mul_i32 s%d, s%d, 168' % (sT0, sT0))
            a('s_mul_i32 s%d, s%d, 6' % (sT1, sJ))
            a('s_add_u32 s%d, s%d, s%d' % (sT0, sT0, sT1))
            a('s_add_u32 s%d, s%d, s%d' % (sT0, sT0, sTa[s_]))
            a('s_lshl_b32 s%d, s%d, 9' % (sT0, sT0))
            a('v_permlane16_swap_b32 v%d, v%d' % (d, d + 2))
            a('v_permlane16_swap_b32 v%d, v%d' % (d + 1, d + 3))
            a('buffer_store_dwordx4 %s, v%d, s[%d:%d], s%d offen%s' % (v(d, 4), vStQ, QKV, QKV + 3, sT0, st), 'stq')

    def epilogue_b(csreg, breg):
        a.comment('--- epilogue B')
        a.stamp('epiB')
        colsum_exchange(sTb[0], sTb, csreg)
        a.wait(vm='b1')
        for s_ in range(4):
            for h in range(2):
                a('v_lshlrev_b32 v%d, 16, v%d' % (breg + 4 * s_ + 2 * h, vB1 + 2 * s_ + h))
                a('v_and_b32 v%d, 0xffff0000, v%d' % (breg + 4 * s_ + 2 * h + 1, vB1 + 2 * s_ + h))
        a.wait(lg='csr')
        for s_ in range(4):
            for mt in range(2):
                d = ACCB + (s_ * 2 + mt) * 4
                for r in range(4):
                    a('v_fma_f32 v%d, -v%d, v%d, v%d' % (d + r, vMean[mt], csreg + 4 * s_ + r, d + r))
                for r in range(4):
                    a('v_fma_f32 v%d, v%d, v%d, v%d' % (d + r, d + r, vRstd[mt], breg + 4 * s_ + r))
                for r in range(4):
                    a('v_max_f32 v%d, 0, v%d' % (d + r, d + r))
                for r in range(4):
                    a('v_mul_f32 v%d, v%d, v%d' % (d + r, d + r, d + r))
            d = ACCB + s_ * 8
            a('v_cvt_pk_bf16_f32 v%d, v%d, v%d' % (d, d, d + 1))
            a('v_cvt_pk_bf16_f32 v%d, v%d, v%d' % (d + 1, d + 2, d + 3))
            a('v_cvt_pk_bf16_f32 v%d, v%d, v%d' % (d + 2, d + 4, d + 5))
            a('v_cvt_pk_bf16_f32 v%d, v%d, v%d' % (d + 3, d + 6, d + 7))
            a('s_lshl_b32 s%d, s%d, 2' % (sT0, sI))
            a('s_add_u32 s%d, s%d, s%d' % (sT0, sT0, sRG))
            a('s_mul_i32 s%d, s%d, 288' % (sT0, sT0))
            a('s_lshl_b32 s%d, s%d, 3' % (sT1, sJ))
            a('s_add_u32 s%d, s%d, s%d' % (sT0, sT0, sT1))
            a('s_add_u32 s%d, s%d, s%d' % (sT0, sT0, sTb[s_]))
            a('s_lshl_b32 s%d, s%d, 9' % (sT0, sT0))
            a('v_permlane16_swap_b32 v%d, v%d' % (d, d + 2))
            a('v_permlane16_swap_b32 v%d, v%d' % (d + 1, d + 3))
            a('buffer_store_dwordx4 %s, v%d, s[%d:%d], s%d offen%s' % (v(d, 4), vStH, ACT, ACT + 3, sT0, st), 'sth')

    V(0); R(0)
    for n in range(28):
        a.comment('kstep %d' % n)
        if n + 1 < 28:
            if (n + 1) % 2 == 0: V((n + 1) // 2)
            R(n + 1)
        M(n)
        if n == 13:
            epilogue_a(ACCB)
    epilogue_b(WF, WF + 16)


def phase_att(a, ld='', st='', kvbase=0):
    sHead, sIA, sC0, sOdd, sTmin = 64, 65, 66, 67, 68
    sC = 69
    vL16, vVs, vKrd, vV0, vV1 = 4, 5, 6, 7, 8
    vT0, vT1, vT2, vT3 = 9, 10, 11, 12
    vMx = 13
    vQ = 16; vC0 = 20; vC16 = 24; vOnes = 28
    KF = 32
    VF = 48
    S = 64
    O0, O1, OS = 132, 136, 140
    a('s_and_b32 s%d, s%d, 1' % (sOdd, sIDX))
    a('s_lshl_b32 s%d, s%d, 1' % (sHead, sXCD))
    a('s_add_u32 s%d, s%d, s%d' % (sHead, sHead, sOdd))
    a('s_lshr_b32 s%d, s%d, 1' % (sIA, sIDX))
    a('s_mul_i32 s%d, s%d, 7' % (sC0, sHead))
    a('s_lshr_b32 s%d, s%d, 1' % (sC0, sC0))
    a('v_lshlrev_b32 v%d, 4, v%d' % (vL16, vLANE))
    a('v_and_b32 v%d, 1, v%d' % (vT0, vG))
    a('v_lshlrev_b32 v%d, 7, v%d' % (vT0, vT0))
    a('v_xor_b32 v%d, v%d, v%d' % (vVs, vL16, vT0))
    a('s_lshl_b32 s%d, s%d, 3' % (sT0, sIA))
    a('s_add_u32 s%d, s%d, s%d' % (sT0, sT0, sW))
    a('s_mul_i32 s%d, s%d, 168' % (sT1, sT0))
    a('s_add_u32 s%d, s%d, s%d' % (sT1, sT1, sC0))
    a('s_lshl_b32 s%d, s%d, 8' % (sT1, sT1))
    a('buffer_load_dwordx4 %s, v%d, s[%d:%d], s%d offen%s' % (v(vQ, 4), vL16, QKV, QKV + 3, sT1, ld), 'q')
    a('s_sub_i32 s%d, 16, s%d' % (sTmin, sT0))
    a('s_mul_i32 s%d, s%d, 3' % (sT2, sW))
    for q in range(3):
        a('s_lshl_b32 s%d, s%d, 3' % (sT0, sIA))
        a('s_add_u32 s%d, s%d, s%d' % (sT0, sT0, sT2))
        a('s_add_i32 s%d, s%d, %d' % (sT0, sT0, q - 16))
        a('s_max_i32 s%d, s%d, 0' % (sT0, sT0))
        a('s_mul_i32 s%d, s%d, 168' % (sT0, sT0))
        a('s_add_u32 s%d, s%d, s%d' % (sT0, sT0, sC0))
        a('s_lshl_b32 s%d, s%d, 8' % (sT0, sT0))
        a('s_lshl_b32 s%d, s%d, 10' % (sT3, sT2))
        a('s_add_u32 m0, s%d, %d' % (sT3, kvbase + 24576 + q * 1024))
        a('s_add_u32 s%d, s%d, %d' % (sT1, sT0, 56 * 256))
        a('buffer_load_dwordx4 v%d, s[%d:%d], s%d offen%s lds' % (vL16, QKV, QKV + 3, sT1, ld), 'kv')
        a('s_add_u32 m0, s%d, %d' % (sT3, kvbase + q * 1024))
        a('s_add_u32 s%d, s%d, %d' % (sT1, sT0, 112 * 256))
        a('buffer_load_dwordx4 v%d, s[%d:%d], s%d offen%s lds' % (vVs, QKV, QKV + 3, sT1, ld), 'kv')
    a('s_lshl_b32 s%d, s%d, 10' % (sT0, sW))
    a('s_add_u32 s%d, s%d, %d' % (sT1, sT0, kvbase + 24576))
    a('v_add_u32 v%d, s%d, v%d' % (vKrd, sT1, vL16))
    a('s_add_u32 s%d, s%d, %d' % (sT1, sT0, kvbase))
    a('v_lshrrev_b32 v%d, 2, v%d' % (vT0, vLANE))
    a('v_and_b32 v%d, 3, v%d' % (vT1, vLANE))
    a('v_add_u32 v%d, s%d, v%d' % (vT1, sOdd, vT1))
    for T, dst in ((0, vV0), (1, vV1)):
        if T: a('v_add_u32 v%d, 4, v%d' % (vT1, vT1))
        a('v_lshrrev_b32 v%d, 1, v%d' % (vT2, vT1))
        a('v_and_b32 v%d, 1, v%d' % (vT3, vT2))
        a('v_lshlrev_b32 v%d, 3, v%d' % (vT3, vT3))
        a('v_xor_b32 v%d, v%d, v%d' % (vT3, vT3, vT0))
        a('v_lshlrev_b32 v%d, 4, v%d' % (vT3, vT3))
        a('v_lshl_add_u32 v%d, v%d, 8, v%d' % (vT3, vT2, vT3))
        a('v_and_b32 v%d, 1, v%d' % (vT2, vT1))
        a('v_lshl_add_u32 v%d, v%d, 3, v%d' % (vT3, vT2, vT3))
        a('v_add_u32 v%d, s%d, v%d' % (dst, sT1, vT3))
    a('v_mov_b32 v%d, 0x%x' % (vT3, NEG))
    a('v_lshlrev_b32 v%d, 2, v%d' % (vT0, vG))
    for r in range(4):
        a('v_add_u32 v%d, %d, v%d' % (vT1, r, vT0))
        a('v_cmp_gt_u32 vcc, v%d, v%d' % (vT1, vM16))
        a('v_cndmask_b32 v%d, v%d, 0, vcc' % (vC0 + r, vT3))
        a('v_cndmask_b32 v%d, 0, v%d, vcc' % (vC16 + r, vT3))
        a('v_mov_b32 v%d, s%d' % (vOnes + r, sONES))
    a('s_sub_u32 s%d, 1, s%d' % (sT0, sOdd))
    a('s_lshl_b32 s%d, s%d, 2' % (sT0, sT0))
    a('s_add_u32 s%d, s%d, 3' % (sT1, sOdd))
    a.wait(vm='q')
    a('v_cmp_eq_u32 vcc, s%d, v%d' % (sT0, vG))
    a('v_cndmask_b32 v%d, v%d, 0, vcc' % (vQ, vQ))
    a('v_cndmask_b32 v%d, v%d, 0, vcc' % (vQ + 1, vQ + 1))
    a('v_cmp_eq_u32 vcc, s%d, v%d' % (sT1, vG))
    a('v_cndmask_b32 v%d, v%d, 0, vcc' % (vQ + 2, vQ + 2))
    a('v_cndmask_b32 v%d, v%d, 0, vcc' % (vQ + 3, vQ + 3))
    a('s_mov_b32 s%d, 0x%08x' % (sC, f32bits(28 ** -0.5 * 1.4426950408889634)))
    a.stamp('kv arr')
    a.wait(vm='kv')
    a('s_barrier')
    a.stamp('kv rel')
    def rk(t): a('ds_read_b128 %s, v%d offset:%d' % (v(KF + 4 * (t % 4), 4), vKrd, t * 1024), 'K%d' % t)
    for t in range(3): rk(t)
    for t in range(17):
        if t + 3 < 17: rk(t + 3)
        a.wait(lg='K%d' % t)
        c = v(vC0, 4) if t == 0 else (v(vC16, 4) if t == 16 else '0')
        a('v_mfma_f32_16x16x32_bf16 %s, %s, %s, %s' % (v(S + 4 * t, 4), v(KF + 4 * (t % 4), 4), v(vQ, 4), c))
    def rv(u):
        b = VF + 8 * (u & 1)
        for T, ad in ((0, vV0), (1, vV1)):
            for h in range(2 if u < 8 else 1):
                a('ds_read_b64_tr_b16 %s, v%d offset:%d' % (v(b + 4 * T + 2 * h, 2), ad, (2 * u + h) * 1024), 'V%d' % u)
    rv(0); rv(1)
    a.stamp('qk done')
    Ld = a.newlabel('Lfix')
    a('s_nop 7')
    for t in range(16):
        a('s_cmp_le_i32 s%d, %d' % (sTmin, t))
        a('s_cbranch_scc1 ' + Ld)
        for r in range(4): a('v_mov_b32 v%d, 0x%x' % (S + 4 * t + r, NEG))
    a.label(Ld)
    a('v_max3_f32 v%d, v%d, v%d, v%d' % (vMx, S, S + 1, S + 2))
    a('v_max3_f32 v%d, v%d, v%d, v%d' % (vT0, S + 3, S + 4, S + 5))
    k = 6
    tog = 0
    while k + 1 < 68:
        d = vMx if tog == 0 else vT0
        a('v_max3_f32 v%d, v%d, v%d, v%d' % (d, d, S + k, S + k + 1)); k += 2; tog ^= 1
    a('v_max_f32 v%d, v%d, v%d' % (vMx, vMx, vT0))
    xlane_sum(a, vMx, vT0, 'v_max_f32')
    a('v_mul_f32 v%d, s%d, v%d' % (vMx, sC, vMx))
    a.stamp('max done')
    for u in range(9):
        n = 8 if u < 8 else 4
        b = S + 8 * u
        for r in range(n): a('v_fma_f32 v%d, v%d, s%d, -v%d' % (b + r, b + r, sC, vMx))
        for r in range(n): a('v_exp_f32 v%d, v%d' % (b + r, b + r))
        for r in range(n // 2): a('v_cvt_pk_bf16_f32 v%d, v%d, v%d' % (b + r, b + 2 * r, b + 2 * r + 1))
        a.wait(lg='V%d' % u)
        vb = VF + 8 * (u & 1)
        op = 'v_mfma_f32_16x16x32_bf16' if u < 8 else 'v_mfma_f32_16x16x16_bf16'
        w_ = n // 2
        for o, A in ((O0, vb), (O1, vb + 4), (OS, vOnes)):
            c = '0' if u == 0 else v(o, 4)
            a('%s %s, %s, %s, %s' % (op, v(o, 4), v(A, w_), v(b, w_), c))
        if u + 2 < 9: rv(u + 2)
    a.stamp('pv done')
    a('v_rcp_f32 v%d, v%d' % (vT0, OS))
    a('v_cmp_eq_u32 vcc, 3, v%d' % vG)
    a('v_cndmask_b32 v%d, v%d, 0, vcc' % (vT1, vT0))
    for r in range(4): a('v_mul_f32 v%d, v%d, v%d' % (O0 + r, vT0, O0 + r))
    for r in range(4): a('v_mul_f32 v%d, v%d, v%d' % (O1 + r, vT1, O1 + r))
    for r in range(4): a('v_cvt_pk_bf16_f32 v%d, v%d, v%d' % (O0 + r, O0 + 2 * r, O0 + 2 * r + 1))
    a('s_lshl_b32 s%d, s%d, 3' % (sT0, sIA))
    a('s_add_u32 s%d, s%d, s%d' % (sT0, sT0, sW))
    a('s_mul_i32 s%d, s%d, 72' % (sT0, sT0))
    a('s_add_u32 s%d, s%d, s%d' % (sT0, sT0, sHead))
    a('s_add_u32 s%d, s%d, 56' % (sT0, sT0))
    a('s_lshl_b32 s%d, s%d, 10' % (sT0, sT0))
    a('buffer_store_dwordx4 %s, v%d, s[%d:%d], s%d offen%s' % (v(O0, 4), vL16, ACT, ACT + 3, sT0, st), 'sto')


def f32bits(x):
    import struct
    return struct.unpack('<I', struct.pack('<f', x))[0]


def phase_d(a, ld=''):
    sMT, sNT = 64, 65
    sWs, sOs = 66, 67
    sA = [68, 69, 70]
    sM0 = 71
    sSoff = 72
    vE, vO, vWoE, vWoO, vWo3 = 4, 5, 6, 7, 8
    vRd = [9, 10, 11, 12]
    vAm = [13, 14, 15, 16]
    vT0, vT1, vT2, vT3 = 17, 18, 19, 20
    vL16 = 21
    vXr = 22
    vBr = 26
    vSt = 30
    WFD = 32
    AF = 64
    ACC = 112
    RB = 176
    NSLOT, NA = 5, 3
    a('s_lshl_b32 s%d, s%d, 2' % (sMT, sXCD))
    a('s_and_b32 s%d, s%d, 3' % (sT0, sIDX))
    a('s_add_u32 s%d, s%d, s%d' % (sMT, sMT, sT0))
    a('s_lshr_b32 s%d, s%d, 2' % (sNT, sIDX))
    a('v_bfe_u32 v%d, v%d, 1, 2' % (vT0, vLANE))
    a('v_and_b32 v%d, 1, v%d' % (vT1, vG))
    a('v_xor_b32 v%d, v%d, v%d' % (vT0, vT0, vT1))
    a('v_lshlrev_b32 v%d, 5, v%d' % (vT0, vT0))
    a('v_and_b32 v%d, 1, v%d' % (vT1, vLANE))
    a('v_lshl_add_u32 v%d, v%d, 4, v%d' % (vT0, vT1, vT0))
    a('v_lshrrev_b32 v%d, 3, v%d' % (vT1, vLANE))
    a('v_mul_u32_u24 v%d, 896, v%d' % (vE, vT1))
    a('v_add_u32 v%d, v%d, v%d' % (vE, vE, vT0))
    a('v_xor_b32 v%d, 64, v%d' % (vO, vE))
    a('v_and_b32 v%d, 3, v%d' % (vT1, vT1))
    a('v_mul_u32_u24 v%d, 896, v%d' % (vWo3, vT1))
    a('v_add_u32 v%d, v%d, v%d' % (vWo3, vWo3, vT0))
    a('v_lshrrev_b32 v%d, 5, v%d' % (vT1, vLANE))
    a('v_mul_u32_u24 v%d, %d, v%d' % (vT1, 16 * 896, vT1))
    a('v_add_u32 v%d, v%d, v%d' % (vWoE, vWo3, vT1))
    a('v_xor_b32 v%d, 64, v%d' % (vWoO, vWoE))
    a('v_xor_b32 v%d, 64, v%d' % (vWo3, vWo3))
    a('s_lshl_b32 s%d, s%d, 7' % (sT0, sNT))
    a('s_mul_i32 s%d, s%d, %d' % (sWs, sW, 224 * 896))
    a('s_add_u32 s%d, s%d, s%d' % (sWs, sWs, sT0))
    a('s_mul_i32 s%d, s%d, %d' % (sOs, sW, 56 * 896))
    a('s_add_u32 s%d, s%d, s%d' % (sOs, sOs, sT0))
    a('s_mul_i32 s%d, s%d, %d' % (sM0, sW, NSLOT * 4096))

    def dmaW(s_):
        slot = s_ % NSLOT
        for q in range(4):
            a('s_add_u32 m0, s%d, %d' % (sM0, slot * 4096 + q * 1024))
            if s_ < 7:
                a('s_add_u32 s%d, s%d, %d' % (sSoff, sWs, (32 * s_ + 8 * q) * 896))
                a('buffer_load_dwordx4 v%d, s[%d:%d], s%d offen lds' % (vO if q & 1 else vE, W2, W2 + 3, sSoff), 'W%d' % s_)
            else:
                a('s_add_u32 s%d, s%d, %d' % (sSoff, sOs, (28 * (s_ - 7) + 4 * q) * 896))
                vs = vWo3 if q == 3 else (vWoO if q & 1 else vWoE)
                a('buffer_load_dwordx4 v%d, s[%d:%d], s%d offen lds' % (vs, WO, WO + 3, sSoff), 'W%d' % s_)

    a('v_lshlrev_b32 v%d, 4, v%d' % (vL16, vLANE))
    for ms in range(4):
        a('s_xor_b32 s%d, s%d, %d' % (sT0, sRG, ms))
        a('s_mul_i32 s%d, s%d, %d' % (sT0, sT0, 288 * 256))
        a('v_add_u32 v%d, s%d, v%d' % (vAm[ms], sT0, vL16))
    a('s_mul_i32 s%d, s%d, %d' % (sT0, sMT, 4 * 288 * 256))
    a('s_mul_i32 s%d, s%d, %d' % (sT1, sW, 28 * 256))
    a('s_add_u32 s%d, s%d, s%d' % (sA[0], sT0, sT1))
    a('s_add_u32 s%d, s%d, 4096' % (sA[1], sA[0]))
    a('s_lshl_b32 s%d, s%d, 11' % (sT1, sW))
    a('s_add_u32 s%d, s%d, s%d' % (sA[2], sT0, sT1))
    a('s_add_u32 s%d, s%d, %d' % (sA[2], sA[2], 224 * 256))

    def ldA(s_):
        b = AF + 16 * (s_ % NA)
        so, off = (sA[0], s_ * 1024) if s_ < 4 else ((sA[1], (s_ - 4) * 1024) if s_ < 7 else (sA[2], (s_ - 7) * 1024))
        for ms in range(4):
            a('buffer_load_dwordx4 %s, v%d, s[%d:%d], s%d offen offset:%d%s' % (v(b + 4 * ms, 4), vAm[ms], ACT, ACT + 3, so, off, ld), 'A%d' % s_)

    for s_ in range(NA):
        dmaW(s_); ldA(s_)
    for s_ in range(NA, NSLOT): dmaW(s_)
    a('v_mul_u32_u24 v%d, 896, v%d' % (vT0, vM16))
    a('v_lshl_add_u32 v%d, v%d, 3, v%d' % (vT1, vG, vT0))
    a('v_lshlrev_b32 v%d, 3, v%d' % (vT2, vG))
    a('s_lshl_b32 s%d, s%d, 2' % (sT0, sMT))
    a('s_add_u32 s%d, s%d, s%d' % (sT0, sT0, sRG))
    a('s_mul_i32 s%d, s%d, %d' % (sT0, sT0, 16 * 896))
    a('s_lshl_b32 s%d, s%d, 1' % (sT1, sNT))
    a('s_add_u32 s%d, s%d, s%d' % (sT1, sT1, sCH))
    a('s_lshl_b32 s%d, s%d, 6' % (sT1, sT1))
    a('s_add_u32 s%d, s%d, s%d' % (sT2, sT0, sT1))
    for t in range(2):
        a('buffer_load_dwordx2 %s, v%d, s[%d:%d], s%d offen offset:%d' % (v(vXr + 2 * t, 2), vT1, X, X + 3, sT2, 32 * t), 'res')
        a('buffer_load_dwordx2 %s, v%d, s[%d:%d], s%d offen offset:%d' % (v(vBr + 2 * t, 2), vT2, B2, B2 + 3, sT1, 32 * t), 'res')
    a('v_and_b32 v%d, 1, v%d' % (vT1, vG))
    a('v_lshl_add_u32 v%d, v%d, 5, v%d' % (vSt, vT1, vT0))
    a('v_lshrrev_b32 v%d, 1, v%d' % (vT1, vG))
    a('v_lshl_add_u32 v%d, v%d, 4, v%d' % (vSt, vT1, vSt))
    a('v_bfe_u32 v%d, v%d, 2, 2' % (vT0, vLANE))
    a('v_lshl_add_u32 v%d, v%d, 3, v%d' % (vT1, vG, vT0))
    a('v_lshlrev_b32 v%d, 7, v%d' % (vT1, vT1))
    a('v_and_b32 v%d, 3, v%d' % (vT2, vLANE))
    a('v_lshl_add_u32 v%d, v%d, 3, v%d' % (vT1, vT2, vT1))
    a('v_bfe_u32 v%d, v%d, 3, 2' % (vT0, vLANE))
    a('v_lshl_or_b32 v%d, v%d, 5, v%d' % (vT1, vT0, vT1))
    a('v_add_u32 v%d, s%d, v%d' % (vT1, sM0, vT1))
    a('s_lshl_b32 s%d, s%d, 6' % (sT0, sCH))
    for ts in range(4):
        a('s_xor_b32 s%d, s%d, %d' % (sT1, sT0, ts << 5))
        a('v_xor_b32 v%d, s%d, v%d' % (vRd[ts], sT1, vT1))

    def rdW(s_):
        a.wait(vm='W%d' % s_)
        b = WFD + 16 * (s_ & 1)
        slot = s_ % NSLOT
        for ts in range(4):
            for h in range(2):
                a('ds_read_b64_tr_b16 %s, v%d offset:%d' % (v(b + 4 * ts + 2 * h, 2), vRd[ts], slot * 4096 + h * 512), 'RW%d' % s_)

    rdW(0)
    for s_ in range(9):
        a.comment('D step %d' % s_)
        if s_ + 1 < 9: rdW(s_ + 1)
        a.wait(lg='RW%d' % s_, vm='A%d' % s_)
        a.stamp('D%d' % s_)
        if s_ + NSLOT < 9: dmaW(s_ + NSLOT)
        wb = WFD + 16 * (s_ & 1); ab = AF + 16 * (s_ % NA)
        for ms in range(4):
            for ts in range(4):
                d = ACC + (ts * 4 + ms) * 4
                c = '0' if s_ == 0 else v(d, 4)
                a('v_mfma_f32_16x16x32_bf16 %s, %s, %s, %s' % (v(d, 4), v(wb + 4 * ts, 4), v(ab + 4 * ms, 4), c))
        if s_ + NA < 9: ldA(s_ + NA)
    a.stamp('red arr')
    a('s_barrier')
    a.stamp('red rel')
    for dl in range(1, 8):
        ms, th = dl & 3, dl >> 2
        a('s_xor_b32 s%d, s%d, %d' % (sT0, sW, dl))
        a('s_mul_i32 s%d, s%d, 14336' % (sT0, sT0))
        a('v_add_u32 v%d, s%d, v%d' % (vT0 + (dl & 1), sT0, vL16))
        for e in range(2):
            d = ACC + ((2 * th + e) * 4 + ms) * 4
            a('ds_write_b128 v%d, %s offset:%d' % (vT0 + (dl & 1), v(d, 4), ((dl - 1) * 2 + e) * 1024), 'rw')
    a('s_mul_i32 s%d, s%d, 14336' % (sT0, sW))
    a('v_add_u32 v%d, s%d, v%d' % (vT2, sT0, vL16))
    a.wait(lg='rw')
    a('s_barrier')
    a.stamp('red2')
    for k in range(14):
        a('ds_read_b128 %s, v%d offset:%d' % (v(RB + 4 * k, 4), vT2, k * 1024), 'rr%d' % k)
    a.wait(vm='res')
    own = [ACC, ACC + 16]
    for e in range(2):
        for h in range(2):
            for raw in (vXr, vBr):
                a('v_lshlrev_b32 v%d, 16, v%d' % (vT0, raw + 2 * e + h))
                a('v_and_b32 v%d, 0xffff0000, v%d' % (vT1, raw + 2 * e + h))
                a('v_add_f32 v%d, v%d, v%d' % (own[e] + 2 * h, own[e] + 2 * h, vT0))
                a('v_add_f32 v%d, v%d, v%d' % (own[e] + 2 * h + 1, own[e] + 2 * h + 1, vT1))
    for k in range(14):
        a.wait(lg='rr%d' % k)
        for r in range(4):
            a('v_add_f32 v%d, v%d, v%d' % (own[k & 1] + r, own[k & 1] + r, RB + 4 * k + r))
    o = RB
    a('v_cvt_pk_bf16_f32 v%d, v%d, v%d' % (o, own[0], own[0] + 1))
    a('v_cvt_pk_bf16_f32 v%d, v%d, v%d' % (o + 1, own[0] + 2, own[0] + 3))
    a('v_cvt_pk_bf16_f32 v%d, v%d, v%d' % (o + 2, own[1], own[1] + 1))
    a('v_cvt_pk_bf16_f32 v%d, v%d, v%d' % (o + 3, own[1] + 2, own[1] + 3))
    a('v_permlane16_swap_b32 v%d, v%d' % (o, o + 2))
    a('v_permlane16_swap_b32 v%d, v%d' % (o + 1, o + 3))
    a('buffer_store_dwordx4 %s, v%d, s[%d:%d], s%d offen' % (v(o, 4), vSt, OUT, OUT + 3, sT2), 'out')


HEADER = open('cdna_kernels/%s.s.ref' % NAME).read().split('; Override launch')[0]


DIAG = False
def kernel_text(name, body_fn, kidx=0):
    a = Asm()
    a.diag = DIAG
    end = 'L_end_' + name
    prologue(a, end)
    body_fn(a, end)
    if a.diag:
        a.stamp('issued'); a.wait(vm='all'); a.stamp('end'); a.stamp_flush()
        a('s_lshl_b32 s%d, s2, 3' % sT0)
        a('s_add_u32 s%d, s%d, s%d' % (sT0, sT0, sW))
        a('s_add_u32 s%d, s%d, %d' % (sT0, sT0, kidx * 2048))
        a('s_lshl_b32 s%d, s%d, 8' % (sT0, sT0))
        a('v_lshlrev_b32 v254, 2, v%d' % vLANE)
        a('buffer_store_dword v255, v254, s[96:99], s%d offen' % sT0)
        a.raw('; STAMPS %d %s' % (kidx, '|'.join(a.st_names)))
        L = a.newlabel('Ldbg')
        a('s_cmp_lg_u32 s2, 9'); a('s_cbranch_scc1 ' + L)
        a('s_cmp_lg_u32 s%d, 7' % sW); a('s_cbranch_scc1 ' + L)
        a('v_readlane_b32 s%d, v255, 0' % sT0)
        a('v_subrev_u32 v255, s%d, v255' % sT0)
        a('v_mul_u32_u24 v253, 3, v254')
        a('ds_bpermute_b32 v255, v253, v255')
        a('s_waitcnt lgkmcnt(0)')
        a('buffer_store_dword v255, v254, s[%d:%d], 0 offen' % (DBG, DBG + 3))
        a.label(L)
    a.label(end)
    a('s_endpgm')
    nv = (a.maxv + 1 + 7) // 8 * 8
    txt = '.globl %s\n.p2align 8\n.type %s,@function\n%s:\n' % (name, name, name) + a.text()
    kd = ('.amdhsa_kernel %s\n  .amdhsa_next_free_vgpr %d\n  .amdhsa_next_free_sgpr 102\n  .amdhsa_accum_offset %d\n'
          '  .amdhsa_group_segment_fixed_size 0\n  .amdhsa_kernarg_size 88\n  .amdhsa_user_sgpr_count 2\n'
          '  .amdhsa_user_sgpr_kernarg_segment_ptr 1\n  .amdhsa_system_sgpr_workgroup_id_x 1\n.end_amdhsa_kernel\n') % (name, nv, nv)
    sys.stderr.write('%s: maxv %d maxs %d nops %d lines %d\n' % (name, a.maxv, a.maxs, a.nnop, len(a.lines)))
    return txt, kd


def skip_spare(a, end):
    a('s_cmp_ge_u32 s%d, 28' % sIDX)
    a('s_cbranch_scc1 ' + end)


def main(out):
    ks = [
        ('ab_kernel', lambda a, e: (skip_spare(a, e), phase_ab(a)), 163840),
        ('att_kernel', lambda a, e: phase_att(a), 51200),
        ('d_kernel', lambda a, e: (skip_spare(a, e), phase_d(a)), 163840),
    ]
    s_ = HEADER
    for n, _, lds in ks:
        s_ += '; @launch kernel=%s grid=(256,1,1) block=(512,1,1) lds=%d\n' % (n, lds)
    s_ += '.amdgcn_target "amdgcn-amd-amdhsa--gfx950"\n.text\n'
    kds = ''
    for kidx, (n, f, _) in enumerate(ks):
        t, kd = kernel_text(n, f, kidx)
        s_ += t; kds += '.p2align 6\n' + kd
    s_ += '.section .rodata,"a"\n' + kds
    open(out, 'w').write(s_)


if __name__ == '__main__':
    DIAG = 'diag' in sys.argv
    main(sys.argv[1] if len(sys.argv) > 1 else 'cdna_kernels/%s.s' % NAME)
```
